```python
import torch

def _softmax(x, axis=-1):
    return torch.softmax(x, dim=axis)

def _gelu(x):
    return torch.nn.functional.gelu(x, approximate='tanh')

def _silu(x):
    return torch.nn.functional.silu(x)

def _sigmoid(x):
    return torch.sigmoid(x)

def _layernorm(x, axis=-1, eps=1e-05):
    m = x.mean(dim=axis, keepdim=True)
    v = x.var(dim=axis, keepdim=True, unbiased=False)
    return (x - m) / torch.sqrt(v + eps)

def _scatter_add(tgt, idx, src, axis=0):
    return tgt.clone().index_add_(axis, idx, src)

def _segment_sum(src, seg, n):
    out = torch.zeros((n,) + src.shape[1:], dtype=src.dtype)
    return out.index_add_(0, seg, src)

def _pad(x, pw):
    flat = tuple((v for pair in reversed(pw) for v in pair))
    return torch.nn.functional.pad(x, flat)
kernel_name = 'recurrent_scan__memory_aug_recurrent_mem_tr__glu_gated_glu__prompt'

def setup_inputs():

    _w = lambda a: (lambda t: t.to(torch.bfloat16) if t.is_floating_point() else t)(torch.as_tensor(a))

    def _A_setup():
        B, S, Dm = (1, 2048, 640)
        H, Dh = (32, 192)
        M, seg = (8, 32)
        seg = min(seg, S)
        S = S // seg * seg
        return {'x': _w((lambda *s: torch.randn(*s, dtype=torch.bfloat16) * 0.05)(B, S, Dm)), 'mem0': _w((lambda *s: torch.randn(*s, dtype=torch.bfloat16) * 0.2)(B, M, Dm)), 'Wq': _w((lambda *s: torch.randn(*s, dtype=torch.bfloat16) * 0.8)(Dm, H, Dh) * Dm ** (-0.5)), 'Wk': _w((lambda *s: torch.randn(*s, dtype=torch.bfloat16) * 0.8)(Dm, H, Dh) * Dm ** (-0.5)), 'Wv': _w((lambda *s: torch.randn(*s, dtype=torch.bfloat16) * 0.2)(Dm, H, Dh) * Dm ** (-0.5)), 'Wo': _w((lambda *s: torch.randn(*s, dtype=torch.bfloat16) * 0.2)(H, Dh, Dm) * (H * Dh) ** (-0.5)), 'seg_len': seg}
    _A_in = _A_setup()

    def _B_setup():
        B, S, D, F = (1, 2048, 640, 1536)
        return {'x': _w((lambda *s: torch.randn(*s, dtype=torch.bfloat16) * 0.05)(B, S, D)), 'w_gate': _w((lambda *s: torch.randn(*s, dtype=torch.bfloat16) * 0.2)(D, F)), 'w_up': _w((lambda *s: torch.randn(*s, dtype=torch.bfloat16) * 0.1)(D, F)), 'w_down': _w((lambda *s: torch.randn(*s, dtype=torch.bfloat16) * 0.1)(F, D))}
    _B_in = _B_setup()
    return {'A_x': _A_in['x'], 'A_mem0': _A_in['mem0'], 'A_Wq': _A_in['Wq'], 'A_Wk': _A_in['Wk'], 'A_Wv': _A_in['Wv'], 'A_Wo': _A_in['Wo'], 'A_seg_len': _A_in['seg_len'], 'B_x': _B_in['x'], 'B_w_gate': _B_in['w_gate'], 'B_w_up': _B_in['w_up'], 'B_w_down': _B_in['w_down']}

def reference(A_x, A_mem0, A_Wq, A_Wk, A_Wv, A_Wo, A_seg_len, B_x, B_w_gate, B_w_up, B_w_down):

    def _A_ref(x, mem0, Wq, Wk, Wv, Wo, seg_len):
        B, S, Dm = x.shape
        H, Dh = (Wq.shape[1], Wq.shape[2])
        M = mem0.shape[1]
        scale = Dh ** (-0.5)
        n_seg = S // seg_len
        L = M + seg_len
        idx = torch.arange(L)
        mask = (idx[:, None] < M) | (idx[:, None] >= idx[None, :])
        mem = mem0
        outs = []
        for s in range(n_seg):
            xs = x[:, s * seg_len:(s + 1) * seg_len, :].clone()
            h = torch.concatenate([mem, xs], axis=1)
            q = torch.einsum('btd,dhe->bhte', h, Wq)
            k = torch.einsum('btd,dhe->bhte', h, Wk)
            v = torch.einsum('btd,dhe->bhte', h, Wv)
            scores = torch.einsum('bhqe,bhke->bhqk', q, k) * scale
            scores = torch.where(mask[None, None], scores, -1000000000.0)
            p = _softmax(scores, axis=-1)
            o = torch.einsum('bhqk,bhke->bhqe', p, v)
            o = torch.einsum('bhte,hed->btd', o, Wo)
            mem = o[:, :M, :].clone()
            outs.append(o[:, M:, :])
        return torch.concatenate(outs, axis=1)

    def _B_ref(x, w_gate, w_up, w_down):
        g = torch.einsum('bsd,df->bsf', x, w_gate)
        u = torch.einsum('bsd,df->bsf', x, w_up)
        h = _sigmoid(g) * u
        return torch.einsum('bsf,fd->bsd', h, w_down)
    x = A_x
    xn = _layernorm(x, axis=-1)
    s = _A_ref(xn, A_mem0, A_Wq, A_Wk, A_Wv, A_Wo, A_seg_len)
    g = _silu(_B_ref(xn, B_w_gate, B_w_up, B_w_down))
    return x + s * g
```

```python
import re

REG_RE = re.compile(r'^(-|abs\()?([vas])(\d+)\)?$')
RNG_RE = re.compile(r'^(-)?([vas])\[(\d+):(\d+)\]$')

def regs_of(tok):
    tok = tok.strip()
    m = RNG_RE.match(tok)
    if m:
        return [(m.group(2), i) for i in range(int(m.group(3)), int(m.group(4)) + 1)]
    m = REG_RE.match(tok)
    if m:
        return [(m.group(2), int(m.group(3)))]
    if tok == 'vcc': return [('s', 'vcc')]
    if tok in ('vcc_lo', 'vcc_hi'): return [('s', 'vcc')]
    if tok == 'exec' or tok in ('exec_lo','exec_hi'): return [('s', 'exec')]
    if tok == 'm0': return [('s', 'm0')]
    return []

def split_ops(s):
    out = []; cur = ''; depth = 0
    for ch in s:
        if ch in '[(': depth += 1
        if ch in '])': depth -= 1
        if ch == ',' and depth == 0:
            out.append(cur.strip()); cur = ''
        else:
            cur += ch
    if cur.strip(): out.append(cur.strip())
    return out

TRANS = ('v_exp_', 'v_log_', 'v_rcp_', 'v_rsq_', 'v_sqrt_', 'v_sin_', 'v_cos_')

class Ins:
    __slots__ = ('text', 'mn', 'kind', 'w', 'r', 'passes', 'srcC', 'states', 'trans', 'dpp', 'storedata', 'waddr','lds')
    def __init__(self, text):
        self.text = text
        t = text.split(';')[0].strip()
        self.kind = 'other'; self.w = []; self.r = []; self.passes = 0; self.srcC = []
        self.states = 1; self.trans = False; self.dpp = False; self.storedata = []; self.lds = False
        if not t or t.endswith(':') or t.startswith('.'):
            self.kind = 'label' if t.endswith(':') else 'none'; self.mn = ''; self.states = 0
            return
        sp = t.split(None, 1)
        mn = sp[0]; self.mn = mn
        rest = sp[1] if len(sp) > 1 else ''
        ops = split_ops(rest)
        mods = ''
        if ops:
            last = ops[-1].split()
            ops[-1] = last[0] if last else ''
            mods = ' '.join(last[1:])
        R = lambda i: regs_of(ops[i]) if i < len(ops) else []
        if mn == 's_nop':
            self.kind = 'salu'; self.states = int(ops[0], 0) + 1; return
        if mn.startswith('v_mfma') or mn.startswith('v_smfmac'):
            self.kind = 'mfma'
            self.passes = 8 if '32x32' in mn else 4
            self.w = R(0)
            if mn.startswith('v_smfmac'):
                self.srcC = R(0); self.r = R(1) + R(2) + R(3)
            else:
                self.srcC = R(3); self.r = R(1) + R(2)
            return
        if mn.startswith('v_'):
            self.kind = 'valu'
            self.trans = any(mn.startswith(x) for x in TRANS)
            self.dpp = ('_dpp' in mn) or ('row_' in mods) or ('quad_perm' in mods) or ('row_' in rest) or ('quad_perm' in rest)
            if mn.startswith('v_permlane') and 'swap' in mn:
                self.kind = 'permlane'
                self.w = R(0) + R(1); self.r = R(0) + R(1); return
            if mn.startswith('v_cmp'):
                self.w = R(0); self.r = sum((R(i) for i in range(1, len(ops))), []); return
            if mn.startswith('v_readfirstlane') or mn.startswith('v_readlane'):
                self.kind = 'readlane'
                self.w = R(0); self.r = sum((R(i) for i in range(1, len(ops))), []); return
            if mn.startswith('v_add_co') or mn.startswith('v_sub_co') or mn.startswith('v_addc_co') or mn.startswith('v_subb_co'):
                self.w = R(0) + R(1); self.r = sum((R(i) for i in range(2, len(ops))), []); return
            self.w = R(0); self.r = sum((R(i) for i in range(1, len(ops))), [])
            if mn.startswith('v_fmac') or mn.startswith('v_pk_fmac') or mn.startswith('v_writelane') or 'op_sel' in mods and False:
                self.r += R(0)
            if mn.startswith('v_cndmask') and len(ops) == 3:
                self.r += [('s', 'vcc')]
            return
        if mn.startswith('ds_'):
            self.kind = 'ds'
            if mn.startswith('ds_read') or mn.startswith('ds_bpermute') or mn.startswith('ds_permute') or mn.startswith('ds_swizzle'):
                self.w = R(0); self.r = sum((R(i) for i in range(1, len(ops))), [])
            else:
                self.r = sum((R(i) for i in range(0, len(ops))), [])
                self.storedata = sum((R(i) for i in range(1, len(ops))), [])
            return
        if mn.startswith('global_') or mn.startswith('buffer_') or mn.startswith('flat_'):
            self.kind = 'vmem'
            islds = (' lds' in (' ' + mods)) or ('_lds_' in mn)
            self.lds = islds
            if mn in ('buffer_wbl2', 'buffer_inv'):
                return
            if 'atomic' in mn:
                if 'sc0' in mods:
                    self.w = R(0); self.r = sum((R(i) for i in range(1, len(ops))), [])
                else:
                    self.r = sum((R(i) for i in range(0, len(ops))), [])
            elif 'store' in mn:
                self.r = sum((R(i) for i in range(0, len(ops))), [])
                if mn.startswith('buffer_'): self.storedata = R(0)
                else: self.storedata = R(1)
                if not ('x3' in mn or 'x4' in mn): self.storedata = []
            elif islds:
                self.r = sum((R(i) for i in range(0, len(ops))), []) + [('s', 'm0')]
            else:
                self.w = R(0); self.r = sum((R(i) for i in range(1, len(ops))), [])
            return
        if mn.startswith('s_'):
            self.kind = 'salu'
            if mn.startswith('s_cbranch') or mn == 's_branch':
                self.kind = 'branch'; return
            if mn in ('s_waitcnt', 's_barrier', 's_endpgm', 's_sleep', 's_setprio', 's_sethalt'):
                return
            if mn.startswith('s_cmp') or mn.startswith('s_bitcmp'):
                self.r = sum((R(i) for i in range(0, len(ops))), []); return
            self.w = R(0); self.r = sum((R(i) for i in range(1, len(ops))), [])
            if 'saveexec' in mn: self.w += [('s', 'exec')]
            return

def need(prev, cur):
    n = 0
    pw = set(prev.w)
    if not pw and not prev.storedata and prev.kind != 'mfma':
        return 0
    cr = set(cur.r); cw = set(cur.w)
    vec = lambda s: {x for x in s if x[0] in 'va'}
    sg = lambda s: {x for x in s if x[0] == 's'}
    pvalu = prev.kind in ('valu', 'permlane', 'readlane')
    if pvalu:
        pv = vec(pw); ps = sg(pw)
        if cur.kind == 'mfma' and pv & (cr | set(cur.srcC)): n = max(n, 2)
        if cur.kind == 'permlane' and pv & cr: n = max(n, 2)
        if cur.kind == 'valu' and cur.dpp and pv & cr: n = max(n, 2)
        if cur.kind == 'readlane' and pv & cr: n = max(n, 1)
        if prev.trans and cur.kind in ('valu', 'permlane', 'readlane', 'mfma', 'ds', 'vmem') and pv & cr and not (cur.kind == 'valu' and cur.trans): n = max(n, 1)
        if ps:
            if cur.kind in ('valu', 'permlane') and ps & cr: n = max(n, 2)
            if cur.kind == 'readlane' and ps & cr: n = max(n, 4)
            if cur.kind == 'vmem' and ps & cr: n = max(n, 5)
    if prev.kind == 'mfma':
        P = prev.passes
        d = set(prev.w)
        full = {4: 8, 8: 12, 2: 5, 16: 20}[P]
        ovl = {4: 6, 8: 10, 2: 4, 16: 18}[P]
        if cur.kind == 'mfma':
            if d & cr: n = max(n, full)
            c = set(cur.srcC)
            if d & c:
                if not (c == d and cur.passes == P): n = max(n, ovl)
            elif d & cw: n = max(n, ovl)
        elif cur.kind in ('valu', 'permlane', 'readlane'):
            if d & (cr | cw): n = max(n, full)
            war = {4: 3, 8: 7, 2: 1, 16: 15}[P]
            if set(prev.srcC) & cw: n = max(n, war)
        elif cur.kind in ('ds', 'vmem'):
            if d & (cr | cw): n = max(n, full)
    if prev.storedata and prev.kind == 'vmem':
        sd = set(prev.storedata)
        if sd & cw: n = max(n, 2 if cur.kind in ('valu', 'permlane') else 1)
    if prev.kind == 'salu' and ('s', 'm0') in pw and cur.kind == 'vmem' and cur.lds: n = max(n, 1)
    return n

class Asm:
    def __init__(self):
        self.items = []
    def e(self, text):
        for line in text.split('\n'):
            line = line.strip()
            if not line: continue
            self.items.append(Ins(line))
    def __call__(self, text): self.e(text)
    def label(self, name): self.items.append(Ins(name + ':'))
    def resolve(self):
        out = []
        for ins in self.items:
            if ins.kind in ('label', 'none'):
                out.append(ins); continue
            req = 0; dist = 0
            for p in reversed(out):
                if p.kind in ('label', 'none'): continue
                nd = need(p, ins)
                if nd > dist: req = max(req, nd - dist)
                dist += p.states
                if dist >= 20: break
            while req > 0:
                k = min(req, 16)
                out.append(Ins(f's_nop {k-1}')); req -= k
            out.append(ins)
        self.items = out
        pos = {}
        for i, ins in enumerate(out):
            if ins.kind == 'label': pos[ins.text.rstrip(':').strip()] = i
        problems = []
        for i, ins in enumerate(out):
            if ins.kind == 'branch':
                tgt = ins.text.split()[-1]
                if tgt not in pos: continue
                tail = [x for x in out[max(0, i - 24):i + 1] if x.kind not in ('label', 'none')]
                head = []
                j = pos[tgt]
                while j < len(out) and len(head) < 24:
                    if out[j].kind not in ('label', 'none'): head.append(out[j])
                    j += 1
                hd = 0
                for h in head:
                    dist = hd
                    for p in reversed(tail):
                        nd = need(p, h)
                        if nd > dist: problems.append((p.text, h.text, nd, dist))
                        dist += p.states
                        if dist >= 20: break
                    hd += h.states
                    if hd >= 20: break
        for p in problems:
            print("BRANCH HAZARD:", p)
        assert not problems
    def text(self):
        self.resolve()
        s = []
        for ins in self.items:
            if ins.kind == 'label' or ins.kind == 'none': s.append(ins.text)
            else: s.append(ins.text)
        return '\n'.join(s) + '\n'
    def count(self):
        return sum(1 for i in self.items if i.kind not in ('label', 'none'))

def desc(name, vgpr=512, sgpr=102, accum=256):
    return f""".p2align 6
.amdhsa_kernel {name}
  .amdhsa_next_free_vgpr {vgpr}
  .amdhsa_next_free_sgpr {sgpr}
  .amdhsa_accum_offset {accum}
  .amdhsa_group_segment_fixed_size 0
  .amdhsa_kernarg_size 112
  .amdhsa_user_sgpr_count 2
  .amdhsa_user_sgpr_kernarg_segment_ptr 1
  .amdhsa_system_sgpr_workgroup_id_x 1
.end_amdhsa_kernel
"""
def head(name):
    return f""".globl {name}
.p2align 8
.type {name},@function
{name}:
"""
```

```python
from asmlib import *
from layout import *

LOG2E = 1.4426950408889634
SC = (192 ** -0.5) * LOG2E
import struct
def f32hex(x): return '0x%08x' % struct.unpack('<I', struct.pack('<f', x))[0]

class Lgkm:
    def __init__(self, a): self.a = a; self.q = []
    def issue(self, text, tag):
        self.a(text); self.q.append(tag)
        assert len(self.q) <= 15, "too many outstanding lds ops"
    def need(self, tag):
        if tag not in self.q: return
        i = self.q.index(tag)
        n = len(self.q) - 1 - i
        self.a(f's_waitcnt lgkmcnt({n})')
        self.q = self.q[i + 1:]
    def drain(self):
        if self.q: self.a('s_waitcnt lgkmcnt(0)'); self.q = []

SRD_WS = 's[4:7]'; SRD_A = 's[8:11]'; SRD_B = 's[12:15]'; SRD_X = 's[16:19]'; SRD_O = 's[20:23]'
sW = 's24'; sIDX = 's25'; sSTEP = 's26'; sPAR = 's27'
sMEM = ['s28', 's29', 's30']; sP = ['s31', 's32', 's33']; sU = ['s34', 's35', 's36']; sPT = ['s37', 's38', 's39']
sT0, sT1, sT2, sT3 = 's40', 's41', 's42', 's43'

def mk_srd(a, srd_lo, ptr_lo, size):
    a(f's_mov_b32 s{srd_lo}, s{ptr_lo}')
    a(f's_and_b32 s{srd_lo+1}, s{ptr_lo+1}, 0xffff')
    a(f's_mov_b32 s{srd_lo+2}, {size}')
    a(f's_mov_b32 s{srd_lo+3}, 0x20000')

def rotate(a, r):
    a(f's_mov_b32 {sT0}, {r[0]}'); a(f's_mov_b32 {r[0]}, {r[1]}'); a(f's_mov_b32 {r[1]}, {r[2]}'); a(f's_mov_b32 {r[2]}, {sT0}')

def ring_init(a):
    for i in range(3):
        a(f's_add_u32 {sMEM[i]}, {sPAR}, {MEM_BASE + i*MEM_SLOT}')
        a(f's_add_u32 {sP[i]}, {sPAR}, {P_BASE + i*P_SLOT}')
        if i < 2: a(f's_add_u32 {sU[i]}, {sPAR}, {U_BASE + i*U_SLOT}')
        else: a(f's_add_u32 {sU[i]}, s83, {U2_BASE}')
        a(f's_mov_b32 {sPT[i]}, {PT_BASE + i*PT_SLOT}')

def poll_masked(a, name, loads, tmp, timeout_label, first_exec=None, sleep=0):
    n = len(loads)
    for i, (d, nr, txt) in enumerate(loads):
        if first_exec and first_exec[i]: a(f's_mov_b64 exec, {first_exec[i]}')
        a(txt)
        if first_exec and first_exec[i]: a('s_mov_b64 exec, -1')
    a(f's_mov_b32 {sT2}, 0')
    a.label(f'{name}_loop')
    a(f's_mov_b64 s[44:45], 0')
    for i, (d, nr, txt) in enumerate(loads):
        a(f's_waitcnt vmcnt({n-1})')
        if nr == 4:
            a(f'v_max3_u32 v{tmp}, v{d}, v{d+1}, v{d+2}')
            a(f'v_max_u32 v{tmp}, v{tmp}, v{d+3}')
        else:
            a(f'v_max_u32 v{tmp}, v{d}, v{d+1}')
        if first_exec and first_exec[i]: a(f's_mov_b64 exec, {first_exec[i]}')
        a(f'v_cmp_eq_u32 vcc, -1, v{tmp}')
        a('s_or_b64 s[44:45], s[44:45], vcc')
        a('s_mov_b64 exec, vcc')
        a(txt)
        a('s_mov_b64 exec, -1')
    a('s_cmp_eq_u64 s[44:45], 0')
    a(f's_cbranch_scc1 {name}_done')
    if sleep: a(f's_sleep {sleep}')
    a(f's_add_u32 {sT2}, {sT2}, 1')
    a(f's_cmp_lt_u32 {sT2}, 0x100000')
    a(f's_cbranch_scc1 {name}_loop')
    a(f's_branch {timeout_label}')
    a.label(f'{name}_done')
    a('s_waitcnt vmcnt(0)')

def prof(a, slot, on):
    if not on: return
    a(f's_memrealtime s[{88+2*slot}:{89+2*slot}]')
def prof_flush(a, on, reg=60):
    if not on: return
    a('s_waitcnt lgkmcnt(0)')
    for i in range(4): a(f'v_mov_b32 v{reg+i}, s{88+2*i}')
    a(f's_lshl_b32 {sT1}, {sSTEP}, 4')
    a(f's_add_u32 {sT1}, {sT1}, s48')
    a('s_mov_b64 exec, 1')
    a(f'buffer_store_dwordx4 v[{reg}:{reg+3}], off, {SRD_WS}, {sT1}')
    a('s_mov_b64 exec, -1')

def load_weights(a, units, vtr):
    AREA = 36 * 1024
    alloc = []; pos = 0
    for u in units:
        sz = 64 * u['RB']
        if pos + sz > AREA: pos = 0
        alloc.append((pos, sz)); pos += sz
    issued = 0; inflight = []
    def overlaps(i, j):
        (p, s), (q, t) = alloc[i], alloc[j]
        return p < q + t and q < p + s
    def issue(i):
        u = units[i]
        for t in u['soff']: a(t)
        a(f's_add_u32 m0, s49, {alloc[i][0]}')
        for k, vo in enumerate(u['voffs']):
            if k: a('s_add_u32 m0, m0, 1024')
            else: a('s_nop 0')
            a(f'buffer_load_dwordx4 v{vo}, {u["srd"]}, {sT3} offen lds')
    def n_after(i):
        return sum(len(units[j]['voffs']) for j in inflight if j > i)
    done = 0
    while done < len(units):
        while issued < len(units) and not any(overlaps(issued, j) for j in inflight) and \
              sum(len(units[j]['voffs']) for j in inflight) + len(units[issued]['voffs']) <= 60:
            issue(issued); inflight.append(issued); issued += 1
        i = inflight[0]
        a(f's_waitcnt vmcnt({n_after(i)})')
        u = units[i]; RB = u['RB']; cnt = 0
        for tl, (cls, base) in enumerate(u['dests']):
            for q, rowoff in enumerate((0, 4, 32, 36)):
                off = alloc[i][0] + rowoff * RB + tl * 32
                a(f'ds_read_b64_tr_b16 {cls}[{base+2*q}:{base+2*q+1}], v{vtr[RB]} offset:{off}')
                cnt += 1
                if cnt % 12 == 0: a('s_waitcnt lgkmcnt(0)')
        a('s_waitcnt lgkmcnt(0)')
        inflight.pop(0); done += 1

def dma_voffs(a, T, nregs, base, stride, vl, vt):
    per = 2 * T
    magic = {6: 43691, 10: 52429}[per]; sh = {6: 18, 10: 19}[per]
    for i in range(nregs):
        a(f'v_add_u32 v{vt}, {i*64}, v{vl}')
        a(f'v_mul_u32_u24 v{vt+1}, {magic}, v{vt}')
        a(f'v_lshrrev_b32 v{vt+1}, {sh}, v{vt+1}')
        a(f'v_mul_u32_u24 v{vt+2}, {per}, v{vt+1}')
        a(f'v_sub_u32 v{vt+2}, v{vt}, v{vt+2}')
        a(f'v_lshlrev_b32 v{vt+2}, 4, v{vt+2}')
        a(f'v_mul_u32_u24 v{vt+1}, {stride}, v{vt+1}')
        a(f'v_add_u32 v{base+i}, v{vt+1}, v{vt+2}')

def tr_base(a, dst, RB, vl, vt):
    a(f'v_lshrrev_b32 v{vt}, 4, v{vl}')
    a(f'v_lshlrev_b32 v{vt}, 3, v{vt}')
    a(f'v_bfe_u32 v{vt+1}, v{vl}, 2, 2')
    a(f'v_add_u32 v{vt}, v{vt}, v{vt+1}')
    a(f'v_mul_u32_u24 v{vt}, {RB}, v{vt}')
    a(f'v_and_b32 v{vt+1}, 3, v{vl}')
    a(f'v_lshlrev_b32 v{vt+1}, 3, v{vt+1}')
    a(f'v_add3_u32 v{dst}, v{vt}, v{vt+1}, s49')

def place_tiles(order, lds_set):
    loc = {}; na = 0; nv = 0; nl = 0
    for key in order:
        if key in lds_set:
            loc[key] = ('l', nl); nl += 1
        elif na < 32:
            loc[key] = ('a', 8 * na); na += 1
        else:
            loc[key] = ('v', 96 + 8 * nv); nv += 1
    assert na == 32 and nv == 20 and nl == 8
    return loc

WL_BASE = 65536

def finish_lds_tiles(a, loc, tmpbase, vaddr):
    a('s_barrier')
    for key, (cls, n) in loc.items():
        if cls == 'l':
            b = tmpbase + 8 * n
            a(f'ds_write_b128 v{vaddr}, v[{b}:{b+3}] offset:{n*2048}')
            a(f'ds_write_b128 v{vaddr}, v[{b+4}:{b+7}] offset:{n*2048+1024}')
    a('s_waitcnt lgkmcnt(0)')

def gemv(a, L, nchunks, ntiles, loc, keyf, areg, accreg, vidx, vwl, wtmp, a_issue, a_tags):
    seq = [(c, t) for c in range(nchunks) for t in range(ntiles)]
    ldsl = [k for k in seq if loc[keyf(*k)][0] == 'l']
    pend = list(ldsl); tmpuse = {}
    def issue_w(k, ti):
        n = loc[keyf(*k)][1]; b = wtmp + 8 * ti
        L.issue(f'ds_read_b128 v[{b}:{b+3}], v{vwl} offset:{n*2048}', ('w', k, 0))
        L.issue(f'ds_read_b128 v[{b+4}:{b+7}], v{vwl} offset:{n*2048+1024}', ('w', k, 1))
        tmpuse[k] = ti
    nextti = 0; busy = [None, None]
    for si, (c, t) in enumerate(seq):
        if pend:
            k = pend[0]
            if seq.index(k) - si <= 9 and busy[nextti] is None:
                issue_w(k, nextti); busy[nextti] = k; nextti ^= 1; pend.pop(0)
        if t == 0:
            for tg in a_tags(c): L.need(tg)
        cls, base = loc[keyf(c, t)]
        acc = accreg + 4 * t
        if cls == 'l':
            L.need(('w', (c, t), 1))
            ti = tmpuse[(c, t)]; b = wtmp + 8 * ti
            a(f'v_smfmac_f32_16x16x64_bf16 v[{acc}:{acc+3}], v[{areg(c)}:{areg(c)+3}], v[{b}:{b+7}], v{vidx}')
            busy[ti] = None
        else:
            a(f'v_smfmac_f32_16x16x64_bf16 v[{acc}:{acc+3}], v[{areg(c)}:{areg(c)+3}], {cls}[{base}:{base+7}], v{vidx}')

def mem_poll_setup(a, vl, v0):
    a(f'v_lshlrev_b32 v1, 4, v{vl}')
    a(f's_lshl_b32 {sT0}, {sW}, 10')
    a(f'v_add_u32 v2, {sT0}, v1')
    a(f'v_add_u32 v3, 4096, v2')
    a(f's_lshl_b32 {sT1}, {sW}, 9')
    a(f's_add_u32 {sT1}, {sT1}, 16384')
    a(f'v_add_u32 v4, {sT1}, v1')
    a(f'v_mov_b32 v6, v2')
    a(f's_lshl_b32 {sT1}, {sW}, 9')
    a(f's_add_u32 {sT1}, {sT1}, 8192')
    a(f'v_add_u32 v7, {sT1}, v1')
    a(f'v_and_b32 v5, 8, v{vl}')
    a(f'v_cmp_eq_u32 vcc, 0, v5')
    a(f'v_mov_b32 v5, 0xeeeeeeee')
    a(f'v_mov_b32 v8, 0x44444444')
    a(f'v_cndmask_b32 v5, v5, v8, vcc')

LOW32 = 's[50:51]'
def mem_poll(a, name, pd, tmo, sleep=0, pf=0):
    loads = [(pd, 4, f'buffer_load_dwordx4 v[{pd}:{pd+3}], v2, {SRD_WS}, {sMEM[0]} offen sc1'),
             (pd+4, 4, f'buffer_load_dwordx4 v[{pd+4}:{pd+7}], v3, {SRD_WS}, {sMEM[0]} offen sc1'),
             (pd+8, 4, f'buffer_load_dwordx4 v[{pd+8}:{pd+11}], v4, {SRD_WS}, {sMEM[0]} offen sc1')]
    poll_masked(a, name, loads, 9, tmo, first_exec=[None, None, LOW32], sleep=sleep)
    prof(a, 0, pf)
    a(f'ds_write_b128 v6, v[{pd}:{pd+3}]')
    a(f'ds_write_b128 v6, v[{pd+4}:{pd+7}] offset:4096')
    a(f's_mov_b64 exec, {LOW32}')
    a(f'ds_write_b128 v7, v[{pd+8}:{pd+11}]')
    a('s_mov_b64 exec, -1')
    a('s_waitcnt lgkmcnt(0)')
    a('s_barrier')

def store_flag(plain): return '' if plain else ' sc1'

def gen_qk(a, P):
    vl = 10
    MEMB = 0; XB = 10240; KXB = 16384; QXB = 40960
    order = [(c, t) for c in range(10) for t in range(6)]
    lds_set = {(c, t) for c in (6, 7, 8, 9) for t in (4, 5)}
    loc = place_tiles(order, lds_set)
    a(f's_mul_i32 s49, {sW}, {36*1024}')
    dma_voffs(a, 3, 6, 16, 12288, vl, 24)
    tr_base(a, 22, 96, vl, 24)
    units = []
    TMP = 32
    for c in range(10):
        for m in range(2):
            dests = []
            for tl in range(3):
                cls, b = loc[(c, 3*m + tl)]
                dests.append(('v', TMP + 8*b) if cls == 'l' else (cls, b))
            soff = [f's_mul_i32 {sT3}, {sIDX}, 384', f's_mul_i32 {sT2}, {sW}, 96', f's_add_u32 {sT3}, {sT3}, {sT2}',
                    f's_add_u32 {sT3}, {sT3}, {64*c*12288}']
            units.append(dict(srd=SRD_A if m == 0 else SRD_B, soff=soff, T=3, voffs=list(range(16, 22)), dests=dests, RB=96))
    load_weights(a, units, {96: 22})
    a(f's_lshl_b32 {sT0}, {sW}, 14')
    a(f's_add_u32 {sT0}, {sT0}, {WL_BASE}')
    a(f'v_lshlrev_b32 v11, 4, v{vl}')
    a(f'v_add_u32 v11, {sT0}, v11')
    finish_lds_tiles(a, loc, TMP, 11)
    get_parity(a, 'qk')
    mem_poll_setup(a, vl, 0)
    a(f'v_and_b32 v16, 15, v{vl}')
    a(f'v_lshrrev_b32 v17, 4, v{vl}')
    a(f'v_lshrrev_b32 v18, 2, v16')
    a(f'v_xor_b32 v18, v17, v18')
    a(f'v_lshlrev_b32 v18, 3, v18')
    a(f'v_lshlrev_b32 v19, 5, v16')
    a(f's_mul_i32 {sT0}, {sW}, 1536')
    a(f's_add_u32 {sT0}, {sT0}, {XB}')
    a(f'v_add3_u32 v12, v18, v19, {sT0}')
    a(f'v_bfe_u32 v18, v{vl}, 2, 2')
    a(f'v_lshl_add_u32 v18, v17, 2, v18')
    a(f'v_lshlrev_b32 v18, 5, v18')
    a(f'v_and_b32 v19, 3, v{vl}')
    a(f'v_xor_b32 v19, v19, v17')
    a(f'v_lshlrev_b32 v19, 3, v19')
    a(f'v_add_u32 v13, v18, v19')
    a(f'v_add_u32 v13, {XB}, v13')
    a(f'v_lshrrev_b32 v18, 2, v16')
    a(f'v_and_b32 v19, 3, v16')
    a(f'v_lshrrev_b32 v20, 1, v18'); a(f'v_lshlrev_b32 v20, 4, v20')
    a(f'v_lshrrev_b32 v21, 1, v19'); a(f'v_lshl_add_u32 v20, v21, 2, v20')
    a(f'v_and_b32 v21, 1, v18'); a(f'v_lshl_add_u32 v20, v21, 1, v20')
    a(f'v_and_b32 v21, 1, v19'); a(f'v_add_u32 v20, v20, v21')
    a(f'v_lshl_add_u32 v21, v18, 3, v19')
    a(f's_cmp_eq_u32 {sW}, 0')
    a(f's_cselect_b64 vcc, -1, 0')
    a(f'v_cndmask_b32 v20, v21, v20, vcc')
    a(f'v_and_b32 v21, 16, v20'); a(f'v_lshrrev_b32 v22, 2, v21'); a(f'v_lshrrev_b32 v21, 1, v21')
    a(f'v_xor_b32 v20, v20, v21'); a(f'v_xor_b32 v20, v20, v22')
    a(f'v_lshlrev_b32 v20, 4, v20')
    a(f'v_lshl_add_u32 v14, v17, 9, v20')
    a(f's_cmp_eq_u32 {sW}, 0'); a(f's_cselect_b32 s52, 128, 64')
    a(f's_sub_u32 {sT0}, {sW}, 1'); a(f's_lshl_b32 {sT0}, {sT0}, 4')
    a(f'v_add_u32 v18, {sT0}, v16')
    for t in range(2):
        for j in range(4):
            a(f'v_lshrrev_b32 v19, 1, v17'); a(f'v_lshlrev_b32 v19, 4, v19')
            a(f'v_and_b32 v20, 1, v17'); a(f'v_lshl_add_u32 v19, v20, 2, v19')
            a(f'v_add_u32 v19, {8*t + j}, v19')
            r = 54 + 2 * (4*t + j)
            a(f'v_cmp_le_u32 s[{r}:{r+1}], v19, v18')
    a(f's_lshr_b32 {sT0}, {sIDX}, 3'); a(f's_lshl_b32 {sT0}, {sT0}, 14')
    a(f's_and_b32 {sT1}, {sIDX}, 7'); a(f's_lshl_b32 {sT1}, {sT1}, 10'); a(f's_add_u32 s53, {sT0}, {sT1}')
    a(f's_cmp_eq_u32 {sW}, 0'); a('s_cbranch_scc0 qk_su1')
    a(f'v_lshlrev_b32 v18, 7, v17'); a(f'v_lshl_add_u32 v18, v16, 4, v18'); a(f'v_add_u32 v0, s53, v18')
    a(f'v_and_b32 v18, 1, v17'); a(f'v_lshlrev_b32 v18, 6, v18'); a(f'v_lshl_add_u32 v18, v16, 3, v18')
    a(f'v_add_u32 v18, 512, v18'); a(f'v_add_u32 v8, s53, v18')
    a('s_branch qk_su3')
    a.label('qk_su1')
    a(f's_mul_i32 {sT0}, {sIDX}, 2560')
    a(f's_cmp_eq_u32 {sW}, 3'); a('s_cbranch_scc1 qk_su2')
    a(f's_sub_u32 {sT1}, {sW}, 1'); a(f's_lshl_b32 {sT2}, {sT1}, 10'); a(f's_add_u32 {sT2}, {sT2}, {sT0}')
    a(f'v_add_u32 v0, {sT2}, v1')
    a(f's_lshl_b32 {sT2}, {sT1}, 8'); a(f's_add_u32 {sT2}, {sT2}, {sT0}'); a(f's_add_u32 {sT2}, {sT2}, 2048')
    a(f'v_lshlrev_b32 v18, 4, v16'); a(f'v_add_u32 v8, {sT2}, v18')
    a('s_branch qk_su3')
    a.label('qk_su2')
    a(f'v_add_u32 v0, s53, v1')
    a(f'v_add_u32 v8, {sT0}, v1')
    a.label('qk_su3')
    a(f's_mov_b32 s70, 0x00ff00ff'); a(f's_mov_b32 s71, 0x00ff00ff')
    a(f's_mov_b32 s72, 0'); a(f's_mov_b32 s73, 0x00ff00ff')
    a(f's_mov_b32 s74, 0'); a(f's_mov_b32 s75, -1')
    a(f's_mov_b32 s76, 0'); a(f's_mov_b32 s77, 0x0000ffff')
    a(f's_mov_b32 s78, -1'); a(f's_mov_b32 s79, 0xff')
    a(f's_mov_b32 s80, {f32hex(SC)}')
    a(f's_mul_i32 s81, {sIDX}, 12288')
    a(f's_mov_b32 s82, 0')
    def kq_dma(bufoff):
        for (base, gbase) in ((KXB, KX_BASE), (QXB, QX_BASE)):
            a(f's_add_u32 {sT3}, s81, {gbase}')
            a(f's_add_u32 m0, {bufoff}, {base}')
            for i in range(12):
                if i: a('s_add_u32 m0, m0, 1024'); a(f's_add_u32 {sT3}, {sT3}, 1024')
                else: a('s_nop 0')
                a(f'buffer_load_dwordx4 v1, {SRD_WS}, {sT3} offen sc1 lds')
    a(f's_cmp_lg_u32 {sW}, 3'); a('s_cbranch_scc1 qk_nodma0')
    kq_dma('s82')
    a.label('qk_nodma0')
    a(f's_mov_b32 {sSTEP}, 0')
    ACC = 16; AF = 40; WT = 80
    a.label('qk_step')
    prof(a, 3, P['prof'])
    for i in range(24): a(f'v_mov_b32 v{ACC+i}, 0')
    mem_poll(a, 'qk_poll', AF, 'timeout', P.get('sleepM', 0), P['prof'])
    L = Lgkm(a)
    for c in range(10):
        L.issue(f'ds_read_b128 v[{AF+4*c}:{AF+4*c+3}], v1 offset:{MEMB + c*1024}', ('A', c))
    gemv(a, L, 10, 6, loc, lambda c, t: (c, t), lambda c: AF + 4*c, ACC, 5, 11, WT, None, lambda c: [('A', c)])
    for i in range(3):
        q = ACC + 4*i; k = ACC + 12 + 4*i
        for j in range(4): a(f'v_permlane32_swap_b32 v{q+j}, v{k+j}')
        for j in range(4): a(f'v_add_f32 v{q+j}, v{q+j}, v{k+j}')
        a(f'v_cvt_pk_bf16_f32 v{k}, v{q}, v{q+1}')
        a(f'v_cvt_pk_bf16_f32 v{k+1}, v{q+2}, v{q+3}')
        a(f'ds_write_b64 v12, v[{k}:{k+1}] offset:{i*512}')
    a('s_waitcnt lgkmcnt(0)')
    a('s_barrier')
    prof(a, 1, P['prof'])
    a(f's_cmp_eq_u32 {sW}, 3'); a('s_cbranch_scc1 qk_w3')
    a(f'v_add_u32 v84, s82, v14'); a(f'v_add_u32 v84, {KXB}, v84'); a(f'v_xor_b32 v85, s52, v14'); a(f'v_add_u32 v85, s82, v85'); a(f'v_add_u32 v85, {KXB}, v85')
    SA = 16
    def scores(token):
        L = Lgkm(a)
        ST = [28, 48, 64]
        def issue(ks):
            b = ST[ks % 3]
            L.issue(f'ds_read_b64_tr_b16 v[{b}:{b+1}], v13 offset:{ks*1024}', ('x0', ks))
            L.issue(f'ds_read_b64_tr_b16 v[{b+2}:{b+3}], v13 offset:{ks*1024+512}', ('x1', ks))
            if token: L.issue(f'ds_read_b128 v[{b+4}:{b+7}], v86 offset:{ks*2048}', ('q', ks))
            L.issue(f'ds_read_b128 v[{b+8}:{b+11}], v84 offset:{ks*2048}', ('k0', ks))
            L.issue(f'ds_read_b128 v[{b+12}:{b+15}], v85 offset:{ks*2048}', ('k1', ks))
        for ks in range(3): issue(ks)
        for ks in range(6):
            b = ST[ks % 3]; B = b + 4 if token else b
            c0 = lambda r: '0' if ks == 0 else f'v[{r}:{r+3}]'
            L.need(('q', ks) if token else ('x1', ks))
            a(f'v_mfma_f32_16x16x32_bf16 v[{SA}:{SA+3}], v[{b}:{b+3}], v[{B}:{B+3}], {c0(SA)}')
            L.need(('k0', ks))
            a(f'v_mfma_f32_16x16x32_bf16 v[{SA+4}:{SA+7}], v[{b+8}:{b+11}], v[{B}:{B+3}], {c0(SA+4)}')
            L.need(('k1', ks))
            a(f'v_mfma_f32_16x16x32_bf16 v[{SA+8}:{SA+11}], v[{b+12}:{b+15}], v[{B}:{B+3}], {c0(SA+8)}')
            if ks + 3 < 6: issue(ks + 3)
    def softmax(token):
        NEG = 28
        a(f'v_mov_b32 v{NEG}, 0xff800000')
        for j in range(4): a(f'v_cndmask_b32 v{SA+j}, v{NEG}, v{SA+j}, s[74:75]')
        if token:
            for t in range(2):
                for j in range(4):
                    r = 54 + 2*(4*t + j)
                    a(f'v_cndmask_b32 v{SA+4+4*t+j}, v{NEG}, v{SA+4+4*t+j}, s[{r}:{r+1}]')
        m = 29; t0 = 30
        a(f'v_max3_f32 v{m}, v{SA}, v{SA+1}, v{SA+2}')
        a(f'v_max3_f32 v{t0}, v{SA+3}, v{SA+4}, v{SA+5}')
        a(f'v_max3_f32 v{m}, v{m}, v{SA+6}, v{SA+7}')
        a(f'v_max3_f32 v{t0}, v{t0}, v{SA+8}, v{SA+9}')
        a(f'v_max3_f32 v{m}, v{m}, v{SA+10}, v{SA+11}')
        a(f'v_max_f32 v{m}, v{m}, v{t0}')
        def xred(op):
            for sw in ('v_permlane16_swap_b32', 'v_permlane32_swap_b32'):
                a(f'v_mov_b32 v{t0}, v{m}')
                a(f'{sw} v{t0}, v{m}')
                a(f'{op} v{m}, v{m}, v{t0}')
        xred('v_max_f32')
        a(f'v_mul_f32 v{m}, s80, v{m}')
        for i in range(12): a(f'v_fma_f32 v{SA+i}, v{SA+i}, s80, -v{m}')
        for i in range(12): a(f'v_exp_f32 v{SA+i}, v{SA+i}')
        a(f'v_add_f32 v{m}, v{SA}, v{SA+1}')
        a(f'v_add_f32 v{t0}, v{SA+2}, v{SA+3}')
        for i in range(4, 12, 2):
            a(f'v_add_f32 v{m}, v{m}, v{SA+i}')
            a(f'v_add_f32 v{t0}, v{t0}, v{SA+i+1}')
        a(f'v_add_f32 v{m}, v{m}, v{t0}')
        xred('v_add_f32')
        a(f'v_rcp_f32 v{m}, v{m}')
        for i in range(12): a(f'v_mul_f32 v{SA+i}, v{SA+i}, v{m}')
        for i in range(4): a(f'v_cvt_pk_bf16_f32 v{32+i}, v{SA+4+2*i}, v{SA+5+2*i}')
        a(f'v_cvt_pk_bf16_f32 v36, v{SA}, v{SA+1}')
        a(f'v_cvt_pk_bf16_f32 v38, v{SA+2}, v{SA+3}')
        for r in (32, 33, 34, 35, 36, 38): a(f'v_min_u32 v{r}, -2, v{r}')
    a(f's_cmp_eq_u32 {sW}, 0'); a('s_cbranch_scc0 qk_tok')
    scores(False)
    softmax(False)
    a('s_mov_b64 exec, s[70:71]')
    a(f'buffer_store_dwordx4 v[32:35], v0, {SRD_WS}, {sP[0]} offen{store_flag(P["plainP"])}')
    a('v_mov_b32 v37, v38')
    a('s_mov_b64 exec, s[72:73]')
    a(f'buffer_store_dwordx2 v[36:37], v8, {SRD_WS}, {sP[0]} offen{store_flag(P["plainP"])}')
    a('s_mov_b64 exec, -1')
    prof(a, 2, P['prof'])
    prof_flush(a, P['prof'])
    a('s_branch qk_end')
    a.label('qk_tok')
    a(f's_sub_u32 {sT0}, {sW}, 1'); a(f's_lshl_b32 {sT0}, {sT0}, 10'); a(f's_add_u32 {sT0}, {sT0}, s82'); a(f's_add_u32 {sT0}, {sT0}, {QXB}')
    a(f'v_add_u32 v86, {sT0}, v1')
    scores(True)
    softmax(True)
    a(f'buffer_store_dwordx4 v[32:35], v0, {SRD_WS}, {sPT[0]} offen sc1')
    a('v_mov_b32 v37, 0'); a('v_mov_b32 v39, 0')
    a('v_permlane16_swap_b32 v36, v37')
    a('v_permlane16_swap_b32 v38, v39')
    a('s_mov_b64 exec, s[76:77]')
    a(f'buffer_store_dwordx4 v[36:39], v8, {SRD_WS}, {sPT[0]} offen sc1')
    a('s_mov_b64 exec, -1')
    a('s_branch qk_end')
    a.label('qk_w3')
    a('v_mov_b32 v32, -1'); a('v_mov_b32 v33, -1'); a('v_mov_b32 v34, -1'); a('v_mov_b32 v35, -1')
    a('s_mov_b64 exec, s[78:79]')
    a(f'buffer_store_dwordx4 v[32:35], v0, {SRD_WS}, {sP[2]} offen{store_flag(P["plainP"])}')
    a('s_mov_b64 exec, -1')
    a(f'buffer_store_dwordx4 v[32:35], v8, {SRD_WS}, {sPT[1]} offen sc1')
    a(f'buffer_store_dwordx4 v[32:35], v8, {SRD_WS}, {sPT[1]} offen offset:1024 sc1')
    a(f's_mov_b64 exec, {LOW32}')
    a(f'buffer_store_dwordx4 v[32:35], v8, {SRD_WS}, {sPT[1]} offen offset:2048 sc1')
    a('s_mov_b64 exec, -1')
    a(f's_cmp_ge_u32 {sSTEP}, 63'); a('s_cbranch_scc1 qk_end')
    a(f's_add_u32 s81, s81, {32*12288}')
    a(f's_xor_b32 {sT1}, s82, 12288')
    kq_dma(sT1)
    a.label('qk_end')
    a(f's_xor_b32 s82, s82, 12288')
    rotate(a, sMEM); rotate(a, sP); rotate(a, sPT)
    a(f's_add_u32 {sSTEP}, {sSTEP}, 1')
    a(f's_cmp_lt_u32 {sSTEP}, {P["steps"]}')
    a('s_cbranch_scc1 qk_step')
    a('s_branch done')

def gen_vo(a, P):
    vl = 10
    MEMB = 0; YB = 10240
    keysV = [('v', c, t) for c in range(10) for t in range(3)]
    keysO = [('o', c, t) for c in range(3) for t in range(10)]
    lds_set = {('v', c, 2) for c in (6, 7, 8, 9)} | {('o', 2, t) for t in (3, 5, 7, 9)}
    loc = place_tiles(keysV + keysO, lds_set)
    a(f's_mul_i32 s49, {sW}, {36*1024}')
    dma_voffs(a, 3, 6, 0 + 12, 12288, vl, 28)
    dma_voffs(a, 5, 10, 18, 1280, vl, 28)
    tr_base(a, 8, 96, vl, 28)
    tr_base(a, 9, 160, vl, 28)
    TMP = 32
    units = []
    for c in range(10):
        dests = []
        for tl in range(3):
            cls, b = loc[('v', c, tl)]
            dests.append(('v', TMP + 8*b) if cls == 'l' else (cls, b))
        soff = [f's_mul_i32 {sT3}, {sIDX}, 384', f's_mul_i32 {sT2}, {sW}, 96', f's_add_u32 {sT3}, {sT3}, {sT2}', f's_add_u32 {sT3}, {sT3}, {64*c*12288}']
        units.append(dict(srd=SRD_A, soff=soff, T=3, voffs=list(range(12, 18)), dests=dests, RB=96))
    for c in range(3):
        for u2 in range(2):
            dests = []
            for tl in range(5):
                cls, b = loc[('o', c, 5*u2 + tl)]
                dests.append(('v', TMP + 8*b) if cls == 'l' else (cls, b))
            soff = [f's_mul_i32 {sT3}, {sIDX}, {192*1280}', f's_mul_i32 {sT2}, {sW}, 320', f's_add_u32 {sT3}, {sT3}, {sT2}',
                    f's_add_u32 {sT3}, {sT3}, {64*c*1280 + 160*u2}']
            units.append(dict(srd=SRD_B, soff=soff, T=5, voffs=list(range(18, 28)), dests=dests, RB=160))
    load_weights(a, units, {96: 8, 160: 9})
    a(f's_lshl_b32 {sT0}, {sW}, 14'); a(f's_add_u32 {sT0}, {sT0}, {WL_BASE}')
    a(f'v_lshlrev_b32 v11, 4, v{vl}'); a(f'v_add_u32 v11, {sT0}, v11')
    finish_lds_tiles(a, loc, TMP, 11)
    get_parity(a, 'vo')
    mem_poll_setup(a, vl, 0)
    a(f'v_and_b32 v16, 15, v{vl}'); a(f'v_lshrrev_b32 v17, 4, v{vl}')
    a(f'v_lshlrev_b32 v18, 4, v16')
    a(f'v_and_b32 v19, 1, v17'); a(f'v_lshl_add_u32 v18, v19, 3, v18')
    a(f'v_lshrrev_b32 v19, 1, v17'); a(f'v_lshl_add_u32 v18, v19, 8, v18')
    a(f's_mul_i32 {sT0}, {sW}, 768'); a(f's_add_u32 {sT0}, {sT0}, {YB}')
    a(f'v_add_u32 v12, {sT0}, v18')
    a(f'v_bfe_u32 v18, v{vl}, 2, 2'); a(f'v_and_b32 v19, 3, v{vl}')
    a(f'v_lshlrev_b32 v20, 4, v17')
    a(f'v_lshrrev_b32 v21, 1, v18'); a(f'v_lshl_add_u32 v20, v21, 2, v20')
    a(f'v_lshrrev_b32 v21, 1, v19'); a(f'v_lshl_add_u32 v20, v21, 1, v20')
    a(f'v_and_b32 v21, 1, v18'); a(f'v_add_u32 v20, v20, v21')
    a(f'v_lshlrev_b32 v20, 4, v20'); a(f'v_and_b32 v21, 1, v19'); a(f'v_lshl_add_u32 v20, v21, 3, v20')
    a(f'v_add_u32 v13, {YB}, v20')
    a(f'v_lshrrev_b32 v18, 1, v17'); a(f'v_lshlrev_b32 v18, 14, v18'); a(f'v_lshl_add_u32 v18, v16, 4, v18')
    a(f's_mul_i32 {sT0}, {sW}, {10*16384}'); a(f's_lshl_b32 {sT1}, {sIDX}, 8'); a(f's_add_u32 {sT0}, {sT0}, {sT1}')
    a(f'v_add_u32 v14, {sT0}, v18')
    a(f's_mov_b32 s70, 0x0000ffff'); a(f's_mov_b32 s71, 0x0000ffff')
    a(f's_mov_b32 {sSTEP}, 0')
    ACC = 16; AF = 56; WT = 80
    a.label('vo_step')
    for i in range(12): a(f'v_mov_b32 v{ACC+i}, 0')
    mem_poll(a, 'vo_poll', AF, 'timeout', P.get('sleepM', 0), P['prof'])
    L = Lgkm(a)
    ar = lambda c: AF + 4 * (c % 6)
    for c in range(6): L.issue(f'ds_read_b128 v[{ar(c)}:{ar(c)+3}], v1 offset:{MEMB + c*1024}', ('A', c))
    seq_loc = {(c, t): loc[('v', c, t)] for c in range(10) for t in range(3)}
    tmp_i = 0
    wq = [(c, 2) for c in (6, 7, 8, 9)]
    def issue_w(key, n, ti):
        b = WT + 8*ti
        L.issue(f'ds_read_b128 v[{b}:{b+3}], v11 offset:{n*2048}', ('w', key, 0))
        L.issue(f'ds_read_b128 v[{b+4}:{b+7}], v11 offset:{n*2048+1024}', ('w', key, 1))
    wt = {}
    for c in range(10):
        L.need(('A', c))
        for t in range(3):
            cls, base = seq_loc[(c, t)]; acc = ACC + 4*t
            if cls == 'l':
                L.need(('w', (c, t), 1)); b = WT + 8*wt[(c, t)]
                a(f'v_smfmac_f32_16x16x64_bf16 v[{acc}:{acc+3}], v[{ar(c)}:{ar(c)+3}], v[{b}:{b+7}], v5')
            else:
                a(f'v_smfmac_f32_16x16x64_bf16 v[{acc}:{acc+3}], v[{ar(c)}:{ar(c)+3}], {cls}[{base}:{base+7}], v5')
        if c + 6 < 10: L.issue(f'ds_read_b128 v[{ar(c)}:{ar(c)+3}], v1 offset:{MEMB + (c+6)*1024}', ('A', c + 6))
        if c in (4, 5, 6, 7):
            k = (c + 2, 2); ti = c & 1; wt[k] = ti
            issue_w(k, seq_loc[k][1], ti)
    for j in range(4): a(f'v_permlane32_swap_b32 v{ACC+j}, v{ACC+4+j}')
    for j in range(4): a(f'v_add_f32 v{ACC+j}, v{ACC+j}, v{ACC+4+j}')
    a(f'v_cvt_pk_bf16_f32 v{ACC+4}, v{ACC}, v{ACC+1}'); a(f'v_cvt_pk_bf16_f32 v{ACC+5}, v{ACC+2}, v{ACC+3}')
    a(f'ds_write_b64 v12, v[{ACC+4}:{ACC+5}]')
    for j in range(4): a(f'v_mov_b32 v{ACC+12+j}, v{ACC+8+j}')
    for j in range(4): a(f'v_permlane32_swap_b32 v{ACC+8+j}, v{ACC+12+j}')
    for j in range(4): a(f'v_add_f32 v{ACC+8+j}, v{ACC+8+j}, v{ACC+12+j}')
    a(f'v_cvt_pk_bf16_f32 v{ACC+12}, v{ACC+8}, v{ACC+9}'); a(f'v_cvt_pk_bf16_f32 v{ACC+13}, v{ACC+10}, v{ACC+11}')
    a(f's_mov_b64 exec, {LOW32}')
    a(f'ds_write_b64 v12, v[{ACC+12}:{ACC+13}] offset:512')
    a('s_mov_b64 exec, -1')
    a('s_waitcnt lgkmcnt(0)')
    for i in range(40): a(f'v_mov_b32 v{ACC+i}, 0')
    a('s_barrier')
    prof(a, 1, P['prof'])
    L = Lgkm(a)
    for c in range(3):
        L.issue(f'ds_read_b64_tr_b16 v[{AF+4*c}:{AF+4*c+1}], v13 offset:{c*1024}', ('A0', c))
        L.issue(f'ds_read_b64_tr_b16 v[{AF+4*c+2}:{AF+4*c+3}], v13 offset:{c*1024+128}', ('A', c))
    locO = {(c, t): loc[('o', c, t)] for c in range(3) for t in range(10)}
    gemv(a, L, 3, 10, locO, lambda c, t: (c, t), lambda c: AF + 4*c, ACC, 5, 11, WT, None, lambda c: [('A', c)])
    for pr in range(5):
        x = ACC + 8*pr; y = x + 4
        for j in range(4): a(f'v_permlane32_swap_b32 v{x+j}, v{y+j}')
        for j in range(4): a(f'v_add_f32 v{x+j}, v{x+j}, v{y+j}')
        o = 56 + 4 * (pr % 2)
        a(f'v_cvt_pk_bf16_f32 v{o}, v{x}, v{x+1}')
        a(f'v_cvt_pk_bf16_f32 v{o+2}, v{x+2}, v{x+3}')
        a(f'v_mov_b32 v{o+1}, 0'); a(f'v_mov_b32 v{o+3}, 0')
        a(f'v_permlane16_swap_b32 v{o}, v{o+1}')
        a(f'v_permlane16_swap_b32 v{o+2}, v{o+3}')
        for j in range(4): a(f'v_min_u32 v{o+j}, -2, v{o+j}')
        a(f's_add_u32 {sT1}, {sU[0]}, {pr*2*16384}')
        a('s_mov_b64 exec, s[70:71]')
        if not P.get('noU'): a(f'buffer_store_dwordx4 v[{o}:{o+3}], v14, {SRD_WS}, {sT1} offen sc1')
        a('s_mov_b64 exec, -1')
    prof(a, 2, P['prof'])
    a(f's_cmp_eq_u32 {sW}, 0'); a('s_cbranch_scc0 vo_nofl')
    prof_flush(a, P['prof'])
    a.label('vo_nofl')
    for j in range(4): a(f'v_mov_b32 v{64+j}, -1')
    a('s_mov_b64 exec, s[70:71]')
    for pr in range(5):
        a(f's_add_u32 {sT1}, {sU[2]}, {pr*2*16384}')
        if not P.get('noU'): a(f'buffer_store_dwordx4 v[64:67], v14, {SRD_WS}, {sT1} offen sc1')
    a('s_mov_b64 exec, -1')
    rotate(a, sMEM); rotate(a, sU)
    a(f's_add_u32 {sSTEP}, {sSTEP}, 1')
    a(f's_cmp_lt_u32 {sSTEP}, {P["steps"]}')
    a('s_cbranch_scc1 vo_step')
    a('s_branch done')

def gen_r(a, P):
    vl = 10
    RA = 0; RB_ = 4096
    get_parity(a, 'r')
    a(f'v_lshlrev_b32 v1, 4, v{vl}')
    a(f'v_and_b32 v16, 15, v{vl}'); a(f'v_lshrrev_b32 v17, 4, v{vl}')
    a(f'v_and_b32 v18, 7, v{vl}'); a(f'v_bfe_u32 v19, v{vl}, 3, 1')
    a(f'v_cmp_eq_u32 vcc, 0, v19'); a('v_mov_b32 v5, 0xeeeeeeee'); a('v_mov_b32 v8, 0x44444444'); a('v_cndmask_b32 v5, v5, v8, vcc')
    a(f's_lshl_b32 {sT0}, {sW}, 14')
    a(f'v_lshrrev_b32 v20, 1, v17'); a(f'v_lshlrev_b32 v20, 10, v20')
    a(f'v_and_b32 v21, 1, v17'); a(f'v_lshl_add_u32 v21, v21, 1, v19'); a(f'v_lshl_add_u32 v20, v21, 7, v20')
    a(f'v_lshl_add_u32 v20, v18, 4, v20'); a(f'v_add_u32 v2, {sT0}, v20'); a(f'v_add_u32 v3, 4096, v2')
    a(f'v_lshlrev_b32 v20, 11, v17'); a(f'v_lshl_add_u32 v20, v19, 6, v20'); a(f'v_lshl_add_u32 v20, v18, 3, v20')
    a(f'v_add_u32 v20, 512, v20'); a(f'v_add_u32 v4, {sT0}, v20')
    a(f's_lshl_b32 {sT0}, {sIDX}, 14'); a(f's_lshl_b32 {sT1}, {sW}, 11'); a(f's_add_u32 {sT0}, {sT0}, {sT1}')
    a(f'v_lshlrev_b32 v20, 8, v17'); a(f'v_lshl_add_u32 v20, v16, 4, v20'); a(f'v_add_u32 v6, {sT0}, v20')
    a(f's_lshl_b32 {sT0}, {sW}, 13'); a(f'v_add_u32 v7, {sT0}, v1'); a(f'v_add_u32 v11, 4096, v7')
    a(f'v_and_b32 v20, 1, v17'); a(f'v_lshlrev_b32 v20, 2, v20'); a(f'v_lshrrev_b32 v21, 5, v{vl}'); a(f'v_add_u32 v20, v20, v21')
    a(f'v_lshlrev_b32 v20, 6, v20'); a(f'v_lshl_add_u32 v20, v16, 2, v20'); a(f's_lshl_b32 {sT0}, {sW}, 9'); a(f'v_add_u32 v12, {sT0}, v20')
    a(f'v_and_b32 v20, 3, v{vl}'); a(f'v_bfe_u32 v21, v{vl}, 2, 3'); a(f'v_lshrrev_b32 v22, 5, v{vl}')
    a(f'v_lshlrev_b32 v23, 6, v21'); a(f'v_lshl_add_u32 v23, v20, 4, v23'); a(f'v_lshl_add_u32 v13, v22, 3, v23')
    a(f's_lshr_b32 {sT0}, {sIDX}, 2'); a(f's_lshr_b32 {sT1}, {sT0}, 3'); a(f's_lshl_b32 {sT1}, {sT1}, 14'); a(f's_and_b32 {sT0}, {sT0}, 7')
    a(f's_lshl_b32 {sT0}, {sT0}, 10'); a(f's_add_u32 {sT0}, {sT0}, {sT1}'); a(f's_and_b32 {sT1}, {sIDX}, 3'); a(f's_lshl_b32 {sT1}, {sT1}, 8'); a(f's_add_u32 {sT0}, {sT0}, {sT1}')
    a(f'v_lshlrev_b32 v23, 4, v21'); a(f'v_lshl_add_u32 v23, v22, 7, v23'); a(f'v_add_u32 v14, {sT0}, v23')
    a('s_mov_b32 s70, 0x11111111'); a('s_mov_b32 s71, 0x11111111')
    a(f'v_mul_u32_u24 v20, 2560, v17'); a(f'v_lshl_add_u32 v20, v16, 4, v20'); a(f'v_add_u32 v24, 2048, v20')
    a(f'v_lshlrev_b32 v20, 8, v17'); a(f'v_lshl_add_u32 v20, v16, 2, v20'); a(f's_lshl_b32 {sT0}, {sW}, 11'); a(f's_add_u32 {sT0}, {sT0}, {RB_}')
    a(f'v_add_u32 v25, {sT0}, v20')
    a(f'v_lshrrev_b32 v20, 3, v0'); a(f'v_and_b32 v21, 7, v0')
    a(f'v_lshrrev_b32 v22, 4, v20'); a(f'v_lshlrev_b32 v22, 10, v22'); a(f'v_and_b32 v23, 15, v20'); a(f'v_lshl_add_u32 v22, v23, 6, v22')
    a(f'v_lshl_add_u32 v22, v21, 3, v22'); a(f'v_add_u32 v26, {RB_}, v22')
    a(f'v_mul_u32_u24 v22, 1280, v20'); a(f'v_lshl_add_u32 v22, v21, 2, v22'); a(f's_lshl_b32 {sT0}, {sIDX}, 5'); a(f'v_add_u32 v27, {sT0}, v22')
    a(f's_mul_i32 s81, {sIDX}, 32768'); a(f's_add_u32 s81, s81, {VO_BASE}')
    a('s_mov_b32 s82, 0')
    WS = [128, 160]
    def vo_prefetch(set_):
        b = WS[set_]
        for hh in range(8):
            va = 7 if hh < 4 else 11
            a(f'buffer_load_dwordx4 v[{b+4*hh}:{b+4*hh+3}], v{va}, {SRD_WS}, s81 offen offset:{(hh%4)*1024} sc1')
    vo_prefetch(0)
    a(f's_mov_b32 {sSTEP}, 0')
    PX = 32; PM = 48; UO = 56; ACC = 28
    PT = 64
    a.label('r_step')
    for half in range(2):
        nm = f'r{half}'
        W = WS[half]
        for j in range(4): a(f'v_mov_b32 v{ACC+j}, 0')
        loads = []
        for q in range(4):
            loads.append((PX+4*q, 4, f'buffer_load_dwordx4 v[{PX+4*q}:{PX+4*q+3}], v{2 if q < 2 else 3}, {SRD_WS}, {sP[0]} offen offset:{(q%2)*2048} sc1'))
        loads.append((PM, 2, f'buffer_load_dwordx2 v[{PM}:{PM+1}], v4, {SRD_WS}, {sP[0]} offen sc1'))
        loads.append((PM+2, 2, f'buffer_load_dwordx2 v[{PM+2}:{PM+3}], v4, {SRD_WS}, {sP[0]} offen offset:1024 sc1'))
        loads.append((UO, 4, f'buffer_load_dwordx4 v[{UO}:{UO+3}], v6, {SRD_WS}, {sU[0]} offen sc1'))
        loads.append((UO+4, 4, f'buffer_load_dwordx4 v[{UO+4}:{UO+7}], v6, {SRD_WS}, {sU[0]} offen offset:1024 sc1'))
        if P.get('noU'): loads = loads[:6]
        poll_masked(a, f'{nm}_poll', loads, 9, 'timeout', sleep=P.get('sleepR', 0))
        prof(a, 0, P['prof'])
        for q in range(4):
            a(f'v_smfmac_f32_16x16x64_bf16 v[{ACC}:{ACC+3}], v[{PX+4*q}:{PX+4*q+3}], v[{W+8*q}:{W+8*q+7}], v5')
        a(f'v_smfmac_f32_16x16x64_bf16 v[{ACC}:{ACC+3}], v[{PM}:{PM+3}], v[{UO}:{UO+7}], v5')
        a(f'v_permlane32_swap_b32 v{ACC}, v{ACC+1}'); a(f'v_permlane32_swap_b32 v{ACC+2}, v{ACC+3}')
        a(f'v_add_f32 v{ACC}, v{ACC}, v{ACC+1}'); a(f'v_add_f32 v{ACC+2}, v{ACC+2}, v{ACC+3}')
        a(f'ds_write2_b32 v12, v{ACC}, v{ACC+2} offset0:0 offset1:32')
        a('s_waitcnt lgkmcnt(0)')
        a('s_barrier')
        prof(a, 1, P['prof'])
        a(f's_cmp_eq_u32 {sW}, 0'); a(f's_cbranch_scc0 {nm}_nopub')
        for w_ in range(4): a(f'ds_read_b64 v[{40+2*w_}:{41+2*w_}], v13 offset:{RA + w_*512}')
        a('s_waitcnt lgkmcnt(0)')
        a('v_add_f32 v40, v40, v42'); a('v_add_f32 v41, v41, v43'); a('v_add_f32 v44, v44, v46'); a('v_add_f32 v45, v45, v47')
        a('v_add_f32 v40, v40, v44'); a('v_add_f32 v41, v41, v45')
        a('v_cvt_pk_bf16_f32 v40, v40, v41')
        a('v_min_u32 v40, -2, v40')
        a('v_mov_b32_dpp v41, v40 quad_perm:[1,1,1,1] row_mask:0xf bank_mask:0xf')
        a('v_mov_b32_dpp v42, v40 quad_perm:[2,2,2,2] row_mask:0xf bank_mask:0xf')
        a('v_mov_b32_dpp v43, v40 quad_perm:[3,3,3,3] row_mask:0xf bank_mask:0xf')
        a('s_mov_b64 exec, s[70:71]')
        a(f'buffer_store_dwordx4 v[40:43], v14, {SRD_WS}, {sMEM[1]} offen{store_flag(P["plainM"])}')
        prof(a, 2, P['prof'])
        a('s_mov_b64 exec, -1')
        prof_flush(a, P['prof'], 208)
        a('s_mov_b64 exec, s[70:71]')
        a('v_mov_b32 v44, -1'); a('v_mov_b32 v45, -1'); a('v_mov_b32 v46, -1'); a('v_mov_b32 v47, -1')
        a(f'buffer_store_dwordx4 v[44:47], v14, {SRD_WS}, {sMEM[0]} offen{store_flag(P["plainM"])}')
        a('s_mov_b64 exec, -1')
        a.label(f'{nm}_nopub')
        if P.get('noTok'): a(f's_branch {nm}_skiptok')
        a(f'buffer_load_dword v52, v27, {SRD_X}, s82 offen')
        a(f's_add_u32 {sT1}, s82, {G_BASE}')
        a(f'buffer_load_dword v53, v27, {SRD_WS}, {sT1} offen sc1')
        a(f's_cmp_ge_u32 {sSTEP}, 63'); a(f's_cbranch_scc1 {nm}_nopf')
        a(f's_add_u32 s81, s81, {40*32768}')
        vo_prefetch(half ^ 1)
        a.label(f'{nm}_nopf')
        a(f's_mov_b32 {sT2}, 0')
        a.label(f'{nm}_pt')
        a(f's_mul_i32 {sT0}, {sW}, 20480'); a(f's_add_u32 {sT0}, {sT0}, {sPT[0]}')
        a(f's_mov_b32 {sT1}, {sT0}')
        for hh in range(8):
            if hh: a(f's_add_u32 {sT1}, {sT1}, 2560')
            for tt in range(2):
                r = PT + 8*hh + 4*tt
                a(f'buffer_load_dwordx4 v[{r}:{r+3}], v1, {SRD_WS}, {sT1} offen offset:{tt*1024} sc1')
        for u in range(2):
            if u: a(f's_add_u32 {sT0}, {sT0}, 10240')
            for tt in range(2):
                r = 192 + 8*u + 4*tt
                a(f'buffer_load_dwordx4 v[{r}:{r+3}], v24, {SRD_WS}, {sT0} offen offset:{tt*256} sc1')
        a('s_waitcnt vmcnt(0)')
        regs = list(range(PT, PT+64)) + list(range(192, 208))
        a(f'v_max3_u32 v9, v{regs[0]}, v{regs[1]}, v{regs[2]}')
        i = 3
        while i < len(regs):
            if i + 1 < len(regs): a(f'v_max3_u32 v9, v9, v{regs[i]}, v{regs[i+1]}'); i += 2
            else: a(f'v_max_u32 v9, v9, v{regs[i]}'); i += 1
        a('v_cmp_eq_u32 vcc, -1, v9')
        a(f's_cbranch_vccz {nm}_ptok')
        a(f's_add_u32 {sT2}, {sT2}, 1'); a(f's_cmp_lt_u32 {sT2}, 0x100000'); a(f's_cbranch_scc1 {nm}_pt')
        a('s_branch timeout')
        a.label(f'{nm}_ptok')
        TA = 40
        for hh in range(8):
            for tt in range(2):
                r = PT + 8*hh + 4*tt; acc = TA + 4*tt
                c0 = '0' if hh == 0 else f'v[{acc}:{acc+3}]'
                a(f'v_mfma_f32_16x16x32_bf16 v[{acc}:{acc+3}], v[{r}:{r+3}], v[{W+4*hh}:{W+4*hh+3}], {c0}')
        for u in range(2):
            for tt in range(2):
                r = 192 + 8*u + 4*tt; acc = TA + 4*tt
                a(f'v_mfma_f32_16x16x32_bf16 v[{acc}:{acc+3}], v[{r}:{r+3}], v[{UO+4*u}:{UO+4*u+3}], v[{acc}:{acc+3}]')
        for tt in range(2):
            acc = TA + 4*tt
            a(f'ds_write2_b32 v25, v{acc}, v{acc+1} offset0:{tt*256//1 if False else 0} offset1:16') if False else None
        for tt in range(2):
            acc = TA + 4*tt
            if tt == 1: a('v_add_u32 v9, 1024, v25')
            ad = 25 if tt == 0 else 9
            a(f'ds_write2_b32 v{ad}, v{acc}, v{acc+1} offset0:0 offset1:16')
            a(f'ds_write2_b32 v{ad}, v{acc+2}, v{acc+3} offset0:32 offset1:48')
        a('s_waitcnt lgkmcnt(0)')
        a('s_barrier')
        for w_ in range(4): a(f'ds_read_b64 v[{40+2*w_}:{41+2*w_}], v26 offset:{w_*2048}')
        a('s_waitcnt lgkmcnt(0)')
        a('v_add_f32 v40, v40, v42'); a('v_add_f32 v41, v41, v43'); a('v_add_f32 v44, v44, v46'); a('v_add_f32 v45, v45, v47')
        a('v_add_f32 v40, v40, v44'); a('v_add_f32 v41, v41, v45')
        a('v_cvt_pk_bf16_f32 v40, v40, v41')
        a('v_lshlrev_b32 v41, 16, v40'); a('v_and_b32 v42, 0xffff0000, v40')
        a('v_lshlrev_b32 v43, 16, v53'); a('v_and_b32 v44, 0xffff0000, v53')
        a('v_mul_f32 v41, v41, v43'); a('v_mul_f32 v42, v42, v44')
        a('v_cvt_pk_bf16_f32 v40, v41, v42')
        a('v_lshlrev_b32 v41, 16, v40'); a('v_and_b32 v42, 0xffff0000, v40')
        a('v_lshlrev_b32 v43, 16, v52'); a('v_and_b32 v44, 0xffff0000, v52')
        a('v_add_f32 v41, v41, v43'); a('v_add_f32 v42, v42, v44')
        a('v_cvt_pk_bf16_f32 v40, v41, v42')
        a(f'buffer_store_dword v40, v27, {SRD_O}, s82 offen')
        a.label(f'{nm}_skiptok')
        a(f's_add_u32 s82, s82, 40960')
        rotate(a, sMEM); rotate(a, sP); rotate(a, sU); rotate(a, sPT)
        a(f's_add_u32 {sSTEP}, {sSTEP}, 1')
        if half == 0:
            a(f's_cmp_ge_u32 {sSTEP}, {P["steps"]}'); a('s_cbranch_scc1 done')
    a(f's_cmp_lt_u32 {sSTEP}, {P["steps"]}')
    a('s_cbranch_scc1 r_step')
    a('s_branch done')

def common_prologue(a, P):
    a('s_cmp_ge_u32 s2, 256'); a('s_cbranch_scc1 done')
    a('s_load_dwordx2 s[84:85], s[0:1], 104')
    a('s_load_dwordx2 s[86:87], s[0:1], 96')
    a('s_load_dwordx2 s[88:89], s[0:1], 0')
    a('s_load_dwordx2 s[90:91], s[0:1], 88')
    a('s_load_dwordx4 s[92:95], s[0:1], 16')
    a('s_load_dwordx4 s[96:99], s[0:1], 32')
    a('s_getreg_b32 s3, hwreg(HW_REG_XCC_ID, 0, 4)')
    a('v_lshrrev_b32 v1, 6, v0'); a('v_and_b32 v10, 63, v0')
    a(f'v_readfirstlane_b32 {sW}, v1')
    a('s_waitcnt lgkmcnt(0)')
    mk_srd(a, 4, 84, WS_SIZE); mk_srd(a, 16, 88, S*DM*2); mk_srd(a, 20, 90, S*DM*2)
    a('s_mov_b32 s50, -1'); a('s_mov_b32 s51, 0')
    a('s_and_b32 s3, s3, 7')
    a(f's_cmp_eq_u32 {sW}, 0'); a('s_cbranch_scc0 pro_wait')
    a('s_lshl_b32 s40, s3, 2')
    a('v_mov_b32 v2, s40'); a('v_mov_b32 v3, 1'); a('v_mov_b32 v5, 32')
    a('s_mov_b64 exec, 1')
    a('global_atomic_add v4, v2, v3, s[86:87] sc0')
    a('s_waitcnt vmcnt(0)')
    a('global_atomic_add v5, v3, s[86:87]')
    a('v_readfirstlane_b32 s41, v4')
    a('s_lshl_b32 s42, s3, 5'); a('s_add_u32 s42, s42, s41')
    a('s_cmp_lt_u32 s41, 32'); a('s_cbranch_scc1 pro_have')
    a('v_mov_b32 v5, 36')
    a('global_atomic_add v6, v5, v3, s[86:87] sc0')
    a('s_waitcnt vmcnt(0)')
    a('v_readfirstlane_b32 s43, v6')
    a('s_mov_b32 s44, 0')
    a.label('pro_ovw')
    a('v_mov_b32 v5, 32')
    a('global_load_dword v6, v5, s[86:87] sc1'); a('s_waitcnt vmcnt(0)')
    a('v_readfirstlane_b32 s45, v6')
    a('s_cmp_ge_u32 s45, 256'); a('s_cbranch_scc1 pro_ovs')
    a('s_add_u32 s44, s44, 1'); a('s_cmp_lt_u32 s44, 0x400000'); a('s_cbranch_scc1 pro_ovw')
    a('s_mov_b64 exec, -1'); a('s_branch timeout')
    a.label('pro_ovs')
    a('s_mov_b32 s44, 0')
    a.label('pro_ovl')
    a('s_lshl_b32 s45, s44, 2'); a('v_mov_b32 v5, s45')
    a('global_load_dword v6, v5, s[86:87] sc1'); a('s_waitcnt vmcnt(0)')
    a('v_readfirstlane_b32 s45, v6')
    a('s_min_u32 s45, s45, 32'); a('s_sub_u32 s46, 32, s45')
    a('s_cmp_lt_u32 s43, s46'); a('s_cbranch_scc1 pro_ovf')
    a('s_sub_u32 s43, s43, s46'); a('s_add_u32 s44, s44, 1')
    a('s_cmp_lt_u32 s44, 8'); a('s_cbranch_scc1 pro_ovl')
    a('s_mov_b64 exec, -1'); a('s_branch timeout')
    a.label('pro_ovf')
    a('s_lshl_b32 s42, s44, 5'); a('s_add_u32 s42, s42, s45'); a('s_add_u32 s42, s42, s43')
    a.label('pro_have')
    a('v_mov_b32 v4, s42'); a('v_mov_b32 v2, 0')
    a('ds_write_b32 v2, v4')
    a('s_waitcnt lgkmcnt(0)')
    a('s_mov_b64 exec, -1')
    a.label('pro_wait')
    a('s_barrier')
    a('v_mov_b32 v2, 0'); a('ds_read_b32 v4, v2'); a('s_waitcnt lgkmcnt(0)')
    a('v_readfirstlane_b32 s42, v4')
    a('s_barrier')

CAL_OFF = 16384 + 4096
def calibrate(a):
    a(f's_cmp_eq_u32 {sW}, 0'); a('s_cbranch_scc0 cal_done')
    a('s_mov_b64 exec, 1')
    a('v_mov_b32 v2, 0')
    a('s_mov_b32 s44, 0')
    for ch in range(2):
        for par in range(2):
            off = ch * 2 * MB + CAL_OFF + par * 8192
            a(f's_mov_b32 s45, {off}'); a(f's_mov_b32 s{56+par}, -1')
            for rep in range(3):
                a('s_memtime s[46:47]'); a('s_waitcnt lgkmcnt(0)')
                a(f'buffer_store_dword v2, off, {SRD_WS}, s45 offset:{rep*128} sc1')
                a('s_waitcnt vmcnt(0)')
                a('s_memtime s[52:53]'); a('s_waitcnt lgkmcnt(0)')
                a('s_sub_u32 s46, s52, s46'); a(f's_min_u32 s{56+par}, s{56+par}, s46')
        a('s_cmp_lt_u32 s57, s56'); a(f's_cselect_b32 s45, {1 << ch}, 0'); a('s_or_b32 s44, s44, s45')
    a('s_add_u32 s44, s44, 0x100')
    a('v_mov_b32 v3, s44'); a('v_mov_b32 v2, 40')
    a('global_store_dword v2, v3, s[86:87] sc1')
    a('s_waitcnt vmcnt(0)')
    a('s_mov_b64 exec, -1')
    a.label('cal_done')

def get_parity(a, tag):
    a('s_mov_b32 s44, 0')
    a.label(f'{tag}_gp')
    a('v_mov_b32 v16, 40')
    a('global_load_dword v17, v16, s[86:87] sc1'); a('s_waitcnt vmcnt(0)')
    a('v_readfirstlane_b32 s45, v17')
    a('s_cmp_lg_u32 s45, 0'); a(f's_cbranch_scc1 {tag}_gpd')
    a('s_add_u32 s44, s44, 1'); a('s_cmp_lt_u32 s44, 0x100000'); a(f's_cbranch_scc1 {tag}_gp')
    a('s_branch timeout')
    a.label(f'{tag}_gpd')
    a(f's_and_b32 {sPAR}, s45, 1'); a(f's_lshl_b32 {sPAR}, {sPAR}, 13')
    a('s_and_b32 s83, s45, 2'); a('s_lshl_b32 s83, s83, 12')
    ring_init(a)

def gen_chain_kernel(P):
    a = Asm()
    common_prologue(a, P)
    a('s_cmp_eq_u32 s42, 84'); a('s_cbranch_scc0 nocal')
    calibrate(a)
    a('s_branch done')
    a.label('nocal')
    a('s_cmp_ge_u32 s42, 128'); a('s_cbranch_scc1 done')
    a('s_cmp_lt_u32 s42, 64'); a('s_cbranch_scc1 placed')
    a('s_and_b32 s41, s42, 31'); a('s_cmp_ge_u32 s41, 20'); a('s_cbranch_scc1 done')
    a('s_lshr_b32 s43, s42, 5'); a('s_lshl_b32 s42, s41, 1'); a('s_add_u32 s42, s42, s43'); a('s_add_u32 s42, s42, 62')
    a.label('placed')
    a('s_lshl_b32 s48, s42, 10'); a(f's_add_u32 s48, s48, {FLAG_BASE + 65536}')
    a('s_cmp_lt_u32 s42, 32'); a('s_cbranch_scc1 role_qk')
    a('s_cmp_lt_u32 s42, 64'); a('s_cbranch_scc1 role_vo')
    a('s_branch role_r')
    a.label('role_qk')
    a(f's_mov_b32 {sIDX}, s42'); mk_srd(a, 8, 92, DM*H*DH*2); mk_srd(a, 12, 94, DM*H*DH*2)
    gen_qk(a, P)
    a.label('role_vo')
    a(f's_sub_u32 {sIDX}, s42, 32'); mk_srd(a, 8, 96, DM*H*DH*2); mk_srd(a, 12, 98, DM*H*DH*2)
    gen_vo(a, P)
    a.label('role_r')
    a(f's_sub_u32 {sIDX}, s42, 64')
    gen_r(a, P)
    a.label('timeout')
    a('v_mov_b32 v2, 252'); a('v_mov_b32 v3, 0xdead'); a('s_mov_b64 exec, 1')
    a('global_store_dword v2, v3, s[86:87]')
    a.label('done')
    a('s_endpgm')
    return a

if __name__ == '__main__':
    import sys
    fn = sys.argv[1]
    P = dict(prof=0, par=-1, plainP=0, plainM=0, steps=64)
    for kv in sys.argv[2:]:
        k, v = kv.split('='); P[k] = int(v)
    a = gen_chain_kernel(P)
    s = '; @launch kernel=chain_kernel grid=(256,1,1) block=(256,1,1) lds=163840\n.amdgcn_target "amdgcn-amd-amdhsa--gfx950"\n.text\n'
    s += head('chain_kernel') + a.text() + '.section .rodata,"a"\n' + desc('chain_kernel')
    open(fn, 'w').write(s)
    print(fn, 'instructions:', a.count())
```

```python
from asmlib import *
from layout import *
from gen_chain import Lgkm, mk_srd, f32hex

class Vm:
    def __init__(self, a): self.a = a; self.q = []
    def issue(self, text, tag):
        self.a(text); self.q.append(tag)
        assert len(self.q) <= 63
    def need(self, tag):
        if tag not in self.q: return
        i = len(self.q) - 1 - self.q[::-1].index(tag)
        self.a(f's_waitcnt vmcnt({len(self.q) - 1 - i})')
        self.q = self.q[i + 1:]
    def drain(self):
        self.a('s_waitcnt vmcnt(0)'); self.q = []

SRD_WS = 's[4:7]'; SRD_W = 's[8:11]'; SRD_W2 = 's[12:15]'
sW = 's24'
gT0, gT1, gT2, gT3 = 's40', 's41', 's42', 's43'
sH = 's54'
sM = 's55'
sWOFF = 's56'
sBOFF = 's57'
sOUT = 's58'
NBUF = 4; STG = 24576

def lane_consts(a, NT):
    pass

def phase1(a, V, NT, nst, ntile, dma_fn, ndma, tr_fn, bsrc_srd, acc0, looped=False):
    L = Lgkm(a)
    nks = nst * 4
    BD = 8; BR = 10
    breg = lambda ks, tt: 8 * (ks % BR) + 4 * tt
    areg = lambda ks, t: 16 + 24 * (ks % 2) + 4 * t
    def b_issue(ks):
        if ks >= nks: return
        for tt in range(NT):
            r = breg(ks, tt)
            off = (ks % 4) * 1024
            V.issue(f'buffer_load_dwordx4 a[{r}:{r+3}], v{11+tt}, {bsrc_srd}, s{59 + ((ks//4) % 3)} offen offset:{off} sc1', ('B', ks))
    def b_soff(st):
        if st * 4 < nks: a(f's_add_u32 s{59 + (st % 3)}, {sBOFF}, {st * 4096}')
    def a_issue(ks, t, rd):
        st = ks // 4
        vr, imm = tr_fn(t, ks % 4, rd, st % NBUF)
        r = areg(ks, t) + 2 * rd
        L.issue(f'ds_read_b64_tr_b16 v[{r}:{r+1}], v{vr} offset:{imm}', ('A', ks, t, rd))
    for st in range(min(3, nst)): dma_fn(V, st, st % NBUF)
    for st in range(3): b_soff(st)
    for ks in range(BD): b_issue(ks)
    V.need(('W', 0))
    a('s_barrier')
    for t in range(ntile):
        for rd in range(2): a_issue(0, t, rd)
        if len(L.q) >= 12: pass
    for ks in range(nks):
        st, j = divmod(ks, 4)
        L.drain()
        if j == 3 and st + 1 < nst:
            V.need(('W', st + 1))
            a('s_barrier')
        V.need(('B', ks))
        fill = []
        if ks + 1 < nks:
            for t in range(ntile):
                for rd in range(2): fill.append(('a', ks + 1, t, rd))
        if j == 3 and st + 3 < nst: fill.append(('dma', st + 3))
        if (ks + BD) % 4 == 0: fill.insert(0, ('bs', (ks + BD) // 4))
        fill.append(('b', ks + BD))
        nm = ntile * NT
        per = -(-len(fill) // nm)
        fi = 0
        for t in range(ntile):
            for tt in range(NT):
                acc = acc0 + 16 * (t * NT + tt)
                c = '0' if ks == 0 else f'v[{acc}:{acc+15}]'
                ar = areg(ks, t); br = breg(ks, tt)
                a(f'v_mfma_f32_32x32x16_bf16 v[{acc}:{acc+15}], v[{ar}:{ar+3}], a[{br}:{br+3}], {c}')
                for _ in range(per):
                    if fi < len(fill):
                        f = fill[fi]; fi += 1
                        if f[0] == 'a': a_issue(f[1], f[2], f[3])
                        elif f[0] == 'dma': dma_fn(V, f[1], f[1] % NBUF)
                        elif f[0] == 'bs': b_soff(f[1])
                        elif f[0] == 'b': b_issue(f[1])
        assert fi == len(fill)

def dma_generic(voffs, srd_of, soff_of, lds_of):
    def fn(V, st, buf):
        a = V.a
        for i, vo in enumerate(voffs):
            so = soff_of(a, st, i)
            a(f's_add_u32 m0, s62, {buf*STG + lds_of(i)}')
            V.issue(f'buffer_load_dwordx4 v{vo}, {srd_of(i)}, {so} offen lds', ('W', st))
    return fn

def divmod_regs(a, per, nregs, base, stride, rowadd_sgpr, swz, vt):
    magic = {24: (2731, 16), 12: (5462, 16), 20: (3277, 16)}[per]
    for i in range(nregs):
        a(f'v_add_u32 v{vt}, {i*64}, v10')
        a(f'v_mul_u32_u24 v{vt+1}, {magic[0]}, v{vt}')
        a(f'v_lshrrev_b32 v{vt+1}, {magic[1]}, v{vt+1}')
        a(f'v_mul_u32_u24 v{vt+2}, {per}, v{vt+1}')
        a(f'v_sub_u32 v{vt+2}, v{vt}, v{vt+2}')
        if swz:
            a(f'v_lshlrev_b32 v{vt+3}, 1, v{vt+1}'); a(f'v_and_b32 v{vt+3}, 4, v{vt+3}')
            a(f'v_xor_b32 v{vt+2}, v{vt+2}, v{vt+3}')
        a(f'v_lshlrev_b32 v{vt+2}, 4, v{vt+2}')
        a(f'v_add_u32 v{vt+1}, {rowadd_sgpr}, v{vt+1}')
        a(f'v_mul_u32_u24 v{vt+1}, {stride}, v{vt+1}')
        a(f'v_add_u32 v{base+i}, v{vt+1}, v{vt+2}')

def check_magic():
    for per, (m, s) in {24: (2731, 16), 12: (5462, 16), 20: (3277, 16)}.items():
        for i in range(384): assert (i * m) >> s == i // per, (per, i)
check_magic()

def tr_lane(a, dst, RB, rowmode, vt):
    a(f'v_lshrrev_b32 v{vt}, 5, v10')
    a(f'v_lshlrev_b32 v{vt}, {3 if rowmode == 0 else 2}, v{vt}')
    a(f'v_bfe_u32 v{vt+1}, v10, 2, 2')
    a(f'v_add_u32 v{vt}, v{vt}, v{vt+1}')
    a(f'v_mul_u32_u24 v{vt}, {RB}, v{vt}')
    a(f'v_bfe_u32 v{vt+2}, v10, 4, 1'); a(f'v_lshl_add_u32 v{vt}, v{vt+2}, 5, v{vt}')
    a(f'v_and_b32 v{vt+2}, 3, v10'); a(f'v_lshl_add_u32 v{dst}, v{vt+2}, 3, v{vt}')
    a(f'v_lshrrev_b32 v{vt}, 1, v{vt+1}')

def setup_common(a, NT):
    a('v_and_b32 v10, 63, v0'); a('v_lshlrev_b32 v1, 4, v10')
    a(f's_mul_i32 s62, {sW}, 6144')
    a(f's_lshl_b32 s63, {sW}, 4')

def b_setup(a, NT, tile_stride):
    a(f's_mul_i32 {gT0}, {sW}, {NT * tile_stride}')
    for tt in range(NT): a(f'v_add_u32 v{11+tt}, {gT0}, v1') if tt == 0 else a(f'v_add_u32 v{11+tt}, {tile_stride}, v{11+tt-1}')

def store_pairs(a, acc, vaddr, soff, imm0, imm1, regsA, regsB, tmp, flag=' sc1'):
    for pc, (regs, imm) in enumerate(((regsA, imm0), (regsB, imm1))):
        t = tmp + 4 * pc
        for d in range(4): a(f'v_cvt_pk_bf16_f32 v{t+d}, v{acc+regs[2*d]}, v{acc+regs[2*d+1]}')
        a(f'buffer_store_dwordx4 v[{t}:{t+3}], v{vaddr}, {SRD_WS}, {soff} offen offset:{imm}{flag}')

KQ_A = [0, 1, 2, 3, 8, 9, 10, 11]; KQ_B = [4, 5, 6, 7, 12, 13, 14, 15]
VO_A = list(range(8)); VO_B = list(range(8, 16))

def gen_proj(a, NT, lab):
    ACC = 64
    divmod_regs(a, 24, 6, 2 + 2, 12288, 's63', True, 16)
    tr_lane(a, 13, 384, 0, 16)
    a('v_lshlrev_b32 v17, 6, v16')
    a('v_add_u32 v2, v13, v17')
    a('v_sub_u32 v3, 64, v17'); a('v_add_u32 v3, v13, v3')
    a('v_add_u32 v13, 49152, v2'); a('v_add_u32 v15, 49152, v3')
    b_setup(a, NT, 40960)
    a(f's_mul_i32 {sBOFF}, {sM}, {4*NT*40960}'); a(f's_add_u32 {sBOFF}, {sBOFF}, {XN_BASE}')
    a(f's_mul_i32 {sWOFF}, {sH}, 384')
    def soff(a_, st, i):
        if i == 0: a_(f's_add_u32 {gT3}, {sWOFF}, {st*64*12288}')
        return gT3
    dma = dma_generic([4, 5, 6, 7, 8, 9], lambda i: SRD_W, soff, lambda i: i * 1024)
    def tr(t, j, rd, buf):
        base = ((2, 3), (13, 15))[buf // 2][t % 2]
        return base, (buf % 2)*STG + (16*j + 4*rd) * 384 + (t - (t % 2)) * 64
    V = Vm(a)
    phase1(a, V, NT, 10, 6, dma, 6, tr, SRD_WS, ACC)
    a(f's_cmp_eq_u32 s64, 2'); a(f's_cbranch_scc1 {lab}_vo')
    a('v_and_b32 v16, 31, v10'); a('v_lshrrev_b32 v17, 5, v10')
    a(f's_cmp_eq_u32 s64, 1'); a(f's_cbranch_scc1 {lab}_q')
    a('v_lshrrev_b32 v18, 4, v16'); a('v_lshlrev_b32 v18, 1, v18'); a('v_bfe_u32 v19, v16, 2, 1'); a('v_add_u32 v18, v18, v19')
    a('v_lshlrev_b32 v18, 3, v18'); a('v_and_b32 v19, 3, v16'); a('v_add_u32 v18, v18, v19')
    a('v_bfe_u32 v19, v16, 3, 1'); a('v_lshl_add_u32 v18, v19, 2, v18')
    a('v_and_b32 v19, 16, v18'); a('v_lshrrev_b32 v20, 1, v19'); a('v_lshrrev_b32 v19, 2, v19'); a('v_xor_b32 v18, v18, v19'); a('v_xor_b32 v18, v18, v20')
    a('v_lshlrev_b32 v18, 4, v18'); a('v_lshl_add_u32 v14, v17, 9, v18')
    a(f's_mov_b32 {gT0}, {KX_BASE}'); a(f's_mov_b32 {gT1}, 1024')
    a(f's_branch {lab}_kq')
    a.label(f'{lab}_q')
    a('v_lshrrev_b32 v18, 4, v16'); a('v_lshlrev_b32 v18, 10, v18'); a('v_lshl_add_u32 v18, v17, 8, v18')
    a('v_and_b32 v19, 15, v16'); a('v_lshl_add_u32 v14, v19, 4, v18')
    a(f's_mov_b32 {gT0}, {QX_BASE}'); a(f's_mov_b32 {gT1}, 512')
    a.label(f'{lab}_kq')
    a(f'v_add_u32 v15, {gT1}, v14')
    a(f's_lshl_b32 {gT2}, {sM}, 2'); a(f's_add_u32 {gT2}, {gT2}, {sW}'); a(f's_mul_i32 {gT2}, {gT2}, {NT*32*12288}')
    a(f's_mul_i32 {gT3}, {sH}, 12288'); a(f's_add_u32 {gT2}, {gT2}, {gT3}'); a(f's_add_u32 {gT2}, {gT2}, {gT0}')
    for tt in range(NT):
        for t in range(6):
            acc = ACC + 16 * (t * NT + tt)
            a(f's_add_u32 {gT3}, {gT2}, {tt*32*12288 + t*2048}')
            for pc, regs in enumerate((KQ_A, KQ_B)):
                tmp = 16 + 8 * (t % 2) + 4 * pc
                for d in range(4): a(f'v_cvt_pk_bf16_f32 v{tmp+d}, v{acc+regs[2*d]}, v{acc+regs[2*d+1]}')
                a(f'buffer_store_dwordx4 v[{tmp}:{tmp+3}], v{14+pc}, {SRD_WS}, {gT3} offen sc1')
    a(f's_branch {lab}_end')
    a.label(f'{lab}_vo')
    a('s_nop 7')
    a('s_barrier')
    PK = 64
    for t in range(6):
        for tt in range(NT):
            src = ACC + 16 * (t * NT + tt); dst = PK + 8 * (t * NT + tt)
            for d in range(8): a(f'v_cvt_pk_bf16_f32 v{dst+d}, v{src+2*d}, v{src+2*d+1}')
    A2 = PK + 8 * 6 * NT
    a('v_lshrrev_b32 v16, 3, v10'); a('v_and_b32 v17, 7, v10')
    a('v_lshlrev_b32 v18, 1, v16'); a('v_and_b32 v18, 4, v18'); a('v_xor_b32 v17, v17, v18'); a('v_lshlrev_b32 v17, 4, v17')
    a(f's_mul_i32 {gT0}, {sW}, 48'); a(f'v_add_u32 v16, {gT0}, v16'); a('v_mul_u32_u24 v16, 1280, v16'); a('v_add_u32 v4, v16, v17')
    tr_lane(a, 13, 128, 1, 16)
    a('v_lshlrev_b32 v17, 6, v16')
    a('v_add_u32 v2, v13, v17'); a('v_sub_u32 v3, 64, v17'); a('v_add_u32 v3, v13, v3')
    a('v_add_u32 v13, 49152, v2'); a('v_add_u32 v15, 49152, v3')
    a('v_bfe_u32 v16, v10, 4, 1'); a('v_lshlrev_b32 v16, 15, v16'); a('v_lshrrev_b32 v17, 5, v10'); a('v_lshl_add_u32 v16, v17, 8, v16')
    a('v_and_b32 v17, 15, v10'); a('v_lshl_add_u32 v14, v17, 4, v16')
    a(f's_mul_i32 {sWOFF}, {sH}, {192*1280}')
    a(f's_lshl_b32 {gT2}, {sM}, 2'); a(f's_add_u32 {gT2}, {gT2}, {sW}'); a(f's_mul_i32 {sOUT}, {gT2}, {NT*40*32768}')
    a(f's_lshl_b32 {gT3}, {sH}, 10'); a(f's_add_u32 {sOUT}, {sOUT}, {gT3}'); a(f's_add_u32 {sOUT}, {sOUT}, {VO_BASE}')
    V = Vm(a); L = Lgkm(a)
    def dma2(cc):
        for i in range(6):
            a(f's_add_u32 {gT3}, {sWOFF}, {cc*128 + i*8*1280}')
            a(f's_add_u32 m0, s62, {(cc % NBUF)*STG + i*1024}')
            V.issue(f'buffer_load_dwordx4 v4, {SRD_W2}, {gT3} offen lds', ('W', cc))
    for cc in range(3): dma2(cc)
    seq = [(cc, ct, ft, tp) for cc in range(10) for ct in range(2) for ft in range(6) for tp in range(2)]
    breg = lambda n: 16 + 4 * (n % 8)
    def b2_issue(n):
        cc, ct, ft, tp = seq[n]
        buf = cc % NBUF
        base = ((2, 3), (13, 15))[buf // 2][ct]
        row = 32 * ft + 16 * tp
        for rd in range(2):
            r = breg(n) + 2 * rd
            L.issue(f'ds_read_b64_tr_b16 v[{r}:{r+1}], v{base} offset:{(buf % 2)*STG + (row + 8*rd)*128}', ('b', n, rd))
    PF = 5
    V.need(('W', 0)); a('s_barrier')
    for n in range(PF): b2_issue(n)
    pend_epi = []
    def epi_ops(cc, ct):
        ops = []
        CT = 2 * cc + ct
        for tt in range(NT):
            acc = A2 + 16 * (((CT % 2) * NT) + tt)
            so = f's{65 + tt}'
            ops.append(f's_add_u32 {so}, {sOUT}, {tt*40*32768 + 2*CT*32768}')
            for pc, regs in enumerate((VO_A, VO_B)):
                tmp = 48 + 8 * (tt % 2) + 4 * pc
                for d in range(4): ops.append(f'v_cvt_pk_bf16_f32 v{tmp+d}, v{acc+regs[2*d]}, v{acc+regs[2*d+1]}')
                ops.append(('st', f'buffer_store_dwordx4 v[{tmp}:{tmp+3}], v14, {SRD_WS}, {so} offen offset:{pc*512} sc1'))
        return ops
    for n, (cc, ct, ft, tp) in enumerate(seq):
        first = (ft == 0 and tp == 0); CT = 2*cc + ct
        nn = n + PF
        if nn < len(seq):
            c2 = seq[nn][0]
            if seq[nn][1:] == (0, 0, 0) and c2 > 0:
                V.need(('W', c2)); a('s_barrier')
                if c2 + 2 < 10: dma2(c2 + 2)
            b2_issue(nn)
        L.need(('b', n, 1))
        for tt in range(NT):
            acc = A2 + 16 * (((CT % 2) * NT) + tt)
            ar = PK + 8 * (ft * NT + tt) + 4 * tp
            c = '0' if first else f'v[{acc}:{acc+15}]'
            a(f'v_mfma_f32_32x32x16_bf16 v[{acc}:{acc+15}], v[{ar}:{ar+3}], v[{breg(n)}:{breg(n)+3}], {c}')
            if pend_epi and not (ft == 0):
                for _ in range(2):
                    if pend_epi:
                        o = pend_epi.pop(0)
                        if isinstance(o, tuple): V.issue(o[1], ('S',))
                        else: a(o)
        if ft == 5 and tp == 1:
            assert not pend_epi
            pend_epi = epi_ops(cc, ct)
    for o in pend_epi:
        if isinstance(o, tuple): V.issue(o[1], ('S',))
        else: a(o)
    a.label(f'{lab}_end')
    a('s_waitcnt vmcnt(0)')

def gen_gu(a, NT, lab):
    ACC = 64
    divmod_regs(a, 12, 3, 4, 3072, 's63', False, 16)
    tr_lane(a, 2, 192, 0, 16)
    a('v_add_u32 v13, 49152, v2')
    b_setup(a, NT, 40960)
    a(f's_mul_i32 {sBOFF}, {sM}, {4*NT*40960}'); a(f's_add_u32 {sBOFF}, {sBOFF}, {XN_BASE}')
    a(f's_mul_i32 {sWOFF}, {sH}, 192')
    a(f's_mul_i32 s62, {sW}, 3072')
    def soff(a_, st, i):
        if i == 0: a_(f's_add_u32 {gT3}, {sWOFF}, {st*64*3072}')
        return gT3
    dma = dma_generic([4, 5, 6, 4, 5, 6], lambda i: SRD_W if i < 3 else SRD_W2, soff, lambda i: (i % 3) * 1024 + (12288 if i >= 3 else 0))
    def tr(t, j, rd, buf):
        return (2, 13)[buf // 2], (buf % 2)*STG + (12288 if t >= 3 else 0) + (16*j + 4*rd) * 192 + (t % 3) * 64
    V = Vm(a)
    phase1(a, V, NT, 10, 6, dma, 6, tr, SRD_WS, ACC)
    a(f's_lshl_b32 {gT2}, {sM}, 2'); a(f's_add_u32 {gT2}, {gT2}, {sW}'); a(f's_mul_i32 {gT2}, {gT2}, {NT*96*1024}')
    a(f's_mul_i32 {gT3}, {sH}, {6*1024}'); a(f's_add_u32 {gT2}, {gT2}, {gT3}'); a(f's_add_u32 {gT2}, {gT2}, {HID_BASE}')
    a(f's_mov_b32 s65, {f32hex(-1.4426950408889634)}')
    for tt in range(NT):
        for t in range(3):
            g = ACC + 16 * (t * NT + tt); u = ACC + 16 * ((t + 3) * NT + tt)
            for i in range(16): a(f'v_mul_f32 v{g+i}, s65, v{g+i}')
            for i in range(16): a(f'v_exp_f32 v{g+i}, v{g+i}')
            for i in range(16): a(f'v_add_f32 v{g+i}, 1.0, v{g+i}')
            for i in range(16): a(f'v_rcp_f32 v{g+i}, v{g+i}')
            for i in range(16): a(f'v_mul_f32 v{g+i}, v{g+i}, v{u+i}')
            for tp in range(2):
                tmp = 16 + 4 * tp
                for d in range(4): a(f'v_cvt_pk_bf16_f32 v{tmp+d}, v{g+8*tp+2*d}, v{g+8*tp+2*d+1}')
                a(f's_add_u32 {gT3}, {gT2}, {tt*96*1024 + (2*t+tp)*1024}')
                a(f'buffer_store_dwordx4 v[{tmp}:{tmp+3}], v1, {SRD_WS}, {gT3} offen sc1')
    a(f's_mul_i32 s62, {sW}, 6144')
    a('s_waitcnt vmcnt(0)')

def gen_down(a, NT, lab):
    ACC = 64
    divmod_regs(a, 20, 5, 4, 1280, 's63', False, 16)
    tr_lane(a, 2, 320, 1, 16)
    a('v_add_u32 v13, 49152, v2')
    b_setup(a, NT, 96 * 1024)
    a(f's_mul_i32 {sBOFF}, {sM}, {4*NT*96*1024}'); a(f's_add_u32 {sBOFF}, {sBOFF}, {HID_BASE}')
    a(f's_mul_i32 {sWOFF}, {sH}, 320')
    a(f's_mul_i32 s62, {sW}, 5120')
    def soff(a_, st, i):
        if i == 0: a_(f's_add_u32 {gT3}, {sWOFF}, {st*64*1280}')
        return gT3
    dma = dma_generic([4, 5, 6, 7, 8], lambda i: SRD_W, soff, lambda i: i * 1024)
    def tr(t, j, rd, buf):
        return (2, 13)[buf // 2], (buf % 2)*STG + (16*j + 8*rd) * 320 + t * 64
    V = Vm(a)
    phase1(a, V, NT, 24, 5, dma, 5, tr, SRD_WS, ACC)
    a('v_and_b32 v16, 31, v10'); a('v_mul_u32_u24 v16, 1280, v16'); a('v_lshrrev_b32 v17, 5, v10'); a('v_lshl_add_u32 v14, v17, 3, v16')
    a(f's_lshl_b32 {gT2}, {sM}, 2'); a(f's_add_u32 {gT2}, {gT2}, {sW}'); a(f's_mul_i32 {gT2}, {gT2}, {NT*32*1280}')
    a(f's_mul_i32 {gT3}, {sH}, 320'); a(f's_add_u32 {gT2}, {gT2}, {gT3}'); a(f's_add_u32 {gT2}, {gT2}, {G_BASE}')
    a(f's_mov_b32 s65, {f32hex(-1.4426950408889634)}')
    for tt in range(NT):
        for t in range(5):
            d0 = ACC + 16 * (t * NT + tt)
            for i in range(8): a(f'v_cvt_pk_bf16_f32 v{16+i}, v{d0+2*i}, v{d0+2*i+1}')
            for i in range(8):
                a(f'v_lshlrev_b32 v{d0+2*i}, 16, v{16+i}'); a(f'v_and_b32 v{d0+2*i+1}, 0xffff0000, v{16+i}')
            for i in range(16): a(f'v_mul_f32 v{24+i}, s65, v{d0+i}')
            for i in range(16): a(f'v_exp_f32 v{24+i}, v{24+i}')
            for i in range(16): a(f'v_add_f32 v{24+i}, 1.0, v{24+i}')
            for i in range(16): a(f'v_rcp_f32 v{24+i}, v{24+i}')
            for i in range(16): a(f'v_mul_f32 v{24+i}, v{24+i}, v{d0+i}')
            for q in range(4):
                tmp = 40 + 2 * q
                a(f'v_cvt_pk_bf16_f32 v{tmp}, v{24+4*q}, v{24+4*q+1}'); a(f'v_cvt_pk_bf16_f32 v{tmp+1}, v{24+4*q+2}, v{24+4*q+3}')
                a(f's_add_u32 {gT3}, {gT2}, {tt*32*1280 + t*64}')
                a(f'buffer_store_dwordx2 v[{tmp}:{tmp+1}], v14, {SRD_WS}, {gT3} offen offset:{q*16} sc1')
    a(f's_mul_i32 s62, {sW}, 6144')
    a('s_waitcnt vmcnt(0)')

def gen_init(a):
    a('s_cmp_ge_u32 s2, 128'); a('s_cbranch_scc1 init_done')
    a('s_load_dwordx2 s[84:85], s[0:1], 104'); a('s_load_dwordx2 s[88:89], s[0:1], 0'); a('s_load_dwordx2 s[90:91], s[0:1], 8')
    a('v_and_b32 v10, 63, v0'); a('v_lshrrev_b32 v1, 6, v0')
    a('s_waitcnt lgkmcnt(0)')
    mk_srd(a, 4, 84, WS_SIZE); mk_srd(a, 8, 88, S*DM*2); mk_srd(a, 12, 90, 8*DM*2)
    a('v_lshrrev_b32 v2, 4, v10'); a('v_lshl_add_u32 v2, v1, 2, v2'); a('s_lshl_b32 s3, s2, 4'); a('v_add_u32 v2, s3, v2')
    a('v_and_b32 v3, 15, v10')
    a('v_mul_u32_u24 v4, 1280, v2'); a('v_lshl_add_u32 v4, v3, 4, v4')
    for i in range(5): a(f'buffer_load_dwordx4 v[{16+4*i}:{19+4*i}], v4, s[8:11], 0 offen offset:{i*256}')
    a('v_mov_b32 v40, -1'); a('v_mov_b32 v41, -1'); a('v_mov_b32 v42, -1'); a('v_mov_b32 v43, -1')
    a('s_lshl_b32 s3, s2, 12'); a('v_lshlrev_b32 v5, 4, v0'); a('v_add_u32 v5, s3, v5')
    for ps in range(9):
        a(f's_mov_b32 s20, {ps*524288}')
        if ps == 0:
            a('v_cmp_le_u32 vcc, 32768, v5'); a('s_and_saveexec_b64 s[22:23], vcc')
        a('buffer_store_dwordx4 v[40:43], v5, s[4:7], s20 offen')
        if ps == 0: a('s_mov_b64 exec, s[22:23]')
    a('s_cmp_ge_u32 s2, 16'); a('s_cbranch_scc1 init_nofl')
    a('v_mov_b32 v44, 0'); a('v_mov_b32 v45, 0'); a('v_mov_b32 v46, 0'); a('v_mov_b32 v47, 0')
    a(f's_mov_b32 s20, {FLAG_BASE}')
    a('buffer_store_dwordx4 v[44:47], v5, s[4:7], s20 offen')
    a.label('init_nofl')
    a('s_cmp_eq_u32 s2, 127'); a('s_cbranch_scc0 init_nomem')
    for i in range(8):
        blk = i >> 1
        a(f'v_add_u32 v6, {(i & 1)*256}, v0')
        a('v_lshrrev_b32 v7, 6, v6')
        if blk >= 2: a('v_add_u32 v7, 8, v7')
        a('v_and_b32 v8, 7, v6'); a('v_mul_u32_u24 v8, 1280, v8')
        a('v_bfe_u32 v9, v6, 4, 2'); a('v_lshlrev_b32 v9, 5, v9')
        a('v_bfe_u32 v11, v6, 3, 1'); a('v_lshlrev_b32 v11, 2, v11')
        a('v_lshlrev_b32 v12, 7, v7')
        a('v_add3_u32 v8, v8, v9, v11'); a('v_add_u32 v8, v8, v12')
        for p in range(4): a(f'buffer_load_dword v{48+p}, v8, s[12:15], 0 offen offset:{p*8}')
        a('s_waitcnt vmcnt(0)')
        a('v_cmp_gt_u32 vcc, 10, v7')
        for p in range(4): a(f'v_cndmask_b32 v{48+p}, v40, v{48+p}, vcc')
        a(f'v_lshlrev_b32 v6, 4, v6'); a(f's_mov_b32 s20, {blk*8192}')
        a('buffer_store_dwordx4 v[48:51], v6, s[4:7], s20 offen')
    a.label('init_nomem')
    a('s_waitcnt vmcnt(0)')
    F = 64
    for i in range(20):
        a(f'v_lshlrev_b32 v{F+2*i}, 16, v{16+i}'); a(f'v_and_b32 v{F+2*i+1}, 0xffff0000, v{16+i}')
    def rowsum(dst):
        for sh in (8, 4, 2, 1):
            a(f'v_add_f32_dpp v{dst}, v{dst}, v{dst} row_ror:{sh} row_mask:0xf bank_mask:0xf')
    a(f'v_add_f32 v48, v{F}, v{F+1}')
    for i in range(2, 40): a(f'v_add_f32 v48, v48, v{F+i}')
    rowsum(48)
    a(f'v_mul_f32 v48, {f32hex(1/640)}, v48')
    a(f'v_sub_f32 v49, v{F}, v48'); a('v_mul_f32 v50, v49, v49')
    for i in range(1, 40):
        a(f'v_sub_f32 v49, v{F+i}, v48'); a('v_fmac_f32 v50, v49, v49')
    rowsum(50)
    a(f'v_mul_f32 v50, {f32hex(1/640)}, v50')
    rb = lambda r: (a(f'v_cvt_pk_bf16_f32 v{r}, v{r}, v{r}'), a(f'v_lshlrev_b32 v{r}, 16, v{r}'))
    rb(48); rb(50)
    a(f'v_add_f32 v50, {f32hex(1e-5)}, v50'); rb(50)
    a('v_sqrt_f32 v50, v50'); rb(50)
    a('v_rcp_f32 v51, v50')
    a('v_fma_f32 v52, -v50, v51, 2.0'); a('v_mul_f32 v51, v51, v52')
    for i in range(20):
        a(f'v_sub_f32 v{F+2*i}, v{F+2*i}, v48'); a(f'v_sub_f32 v{F+2*i+1}, v{F+2*i+1}, v48')
        a(f'v_cvt_pk_bf16_f32 v53, v{F+2*i}, v{F+2*i+1}')
        a(f'v_lshlrev_b32 v{F+2*i}, 16, v53'); a(f'v_and_b32 v{F+2*i+1}, 0xffff0000, v53')
        a(f'v_mul_f32 v{F+2*i}, v{F+2*i}, v51'); a(f'v_mul_f32 v{F+2*i+1}, v{F+2*i+1}, v51')
        a(f'v_cvt_pk_bf16_f32 v{16+i}, v{F+2*i}, v{F+2*i+1}')
    a('v_lshrrev_b32 v5, 5, v2'); a('v_mul_u32_u24 v5, 40960, v5'); a('v_and_b32 v6, 31, v2'); a('v_lshl_add_u32 v5, v6, 4, v5')
    a('v_lshrrev_b32 v6, 1, v3'); a('v_lshl_add_u32 v5, v6, 10, v5'); a('v_and_b32 v6, 1, v3'); a('v_lshl_add_u32 v5, v6, 9, v5')
    for i in range(5):
        a(f's_mov_b32 s20, {XN_BASE + i*8*1024}')
        a(f'buffer_store_dwordx4 v[{16+4*i}:{19+4*i}], v5, s[4:7], s20 offen')
    a.label('init_done')
    a('s_endpgm')

def load_ptrs(a):
    a('s_load_dwordx2 s[84:85], s[0:1], 104')
    a('s_load_dwordx4 s[68:71], s[0:1], 16')
    a('s_load_dwordx4 s[72:75], s[0:1], 32')
    a('s_load_dwordx4 s[76:79], s[0:1], 64')
    a('s_load_dwordx2 s[80:81], s[0:1], 80')
    a('v_lshrrev_b32 v1, 6, v0')
    a(f'v_readfirstlane_b32 {sW}, v1')
    a('s_waitcnt lgkmcnt(0)')
    mk_srd(a, 4, 84, WS_SIZE)

def run_task(a, NT, lab, kinds=(0,1,2,3,4)):
    WSZ = DM*H*DH*2
    if 3 in kinds: a('s_cmp_eq_u32 s64, 3'); a(f's_cbranch_scc1 {lab}_gu')
    if 4 in kinds: a('s_cmp_eq_u32 s64, 4'); a(f's_cbranch_scc1 {lab}_dn')
    if 0 in kinds:
        a('s_cmp_eq_u32 s64, 0'); a('s_cselect_b32 s8, s70, s68'); a('s_cselect_b32 s9, s71, s69')
        a('s_cmp_eq_u32 s64, 2'); a('s_cselect_b32 s8, s72, s8'); a('s_cselect_b32 s9, s73, s9')
        a('s_and_b32 s9, s9, 0xffff'); a(f's_mov_b32 s10, {WSZ}'); a('s_mov_b32 s11, 0x20000')
        mk_srd(a, 12, 74, WSZ)
        gen_proj(a, NT, lab + 'p')
        a(f's_branch {lab}_taskdone')
    if 3 in kinds:
        a.label(f'{lab}_gu')
        mk_srd(a, 8, 76, DM*FF*2); mk_srd(a, 12, 78, DM*FF*2)
        gen_gu(a, NT, lab + 'g')
        a(f's_branch {lab}_taskdone')
    if 4 in kinds:
        a.label(f'{lab}_dn')
        mk_srd(a, 8, 80, FF*DM*2)
        gen_down(a, NT, lab + 'd')
    a.label(f'{lab}_taskdone')

def gen_gemm_kernel(which, NT=2):
    a = Asm()
    nm = 16 // NT
    a(f's_cmp_ge_u32 s2, 256'); a(f's_cbranch_scc1 {which}_done')
    load_ptrs(a)
    setup_common(a, NT)
    a('s_mov_b32 s67, s2')
    a.label(f'{which}_next')
    if which == 'A':
        a(f's_cmp_ge_u32 s67, {nm*112}'); a(f's_cbranch_scc1 {which}_done')
        a(f's_mul_hi_u32 {sM}, s67, {(2**32 + 111)//112}'); a(f's_mul_i32 {gT0}, {sM}, 112'); a(f's_sub_u32 {gT0}, s67, {gT0}')
        a(f's_lshr_b32 {gT1}, {gT0}, 5'); a(f's_and_b32 {sH}, {gT0}, 31')
        a(f's_cmp_eq_u32 {gT1}, 1'); a('s_cselect_b32 s64, 2, 0')
        a(f's_cmp_eq_u32 {gT1}, 2'); a('s_cselect_b32 s64, 1, s64')
        a(f's_cmp_eq_u32 {gT1}, 3'); a('s_cselect_b32 s64, 3, s64')
    else:
        a(f's_cmp_ge_u32 s67, {nm*4}'); a(f's_cbranch_scc1 {which}_done')
        a(f's_lshr_b32 {sM}, s67, 2'); a(f's_and_b32 {sH}, s67, 3'); a('s_mov_b32 s64, 4')
    run_task(a, NT, which, (0,1,2,3) if which == 'A' else (4,))
    a('s_barrier')
    a('s_add_u32 s67, s67, 256')
    a(f's_branch {which}_next')
    a.label(f'{which}_done')
    a('s_endpgm')
    return a

if __name__ == '__main__':
    import sys
    NT = int(sys.argv[2]) if len(sys.argv) > 2 else 2
    ai = Asm(); gen_init(ai)
    A = gen_gemm_kernel('A', NT); B = gen_gemm_kernel('B', NT)
    s = '; @launch kernel=init_kernel grid=(128,1,1) block=(256,1,1) lds=0\n'
    s += '; @launch kernel=gemma_kernel grid=(256,1,1) block=(256,1,1) lds=98304\n'
    s += '; @launch kernel=gemmb_kernel grid=(256,1,1) block=(256,1,1) lds=98304\n'
    s += '.amdgcn_target "amdgcn-amd-amdhsa--gfx950"\n.text\n'
    s += head('init_kernel') + ai.text() + head('gemma_kernel') + A.text() + head('gemmb_kernel') + B.text()
    s += '.section .rodata,"a"\n' + desc('init_kernel', 128, 102, 128) + desc('gemma_kernel') + desc('gemmb_kernel')
    open(sys.argv[1], 'w').write(s)
    print('init', ai.count(), 'A', A.count(), 'B', B.count())
```

```python
KB = 1024; MB = 1024 * 1024
NSEG = 64; H = 32; DH = 192; DM = 640; S = 2048; FF = 1536
MEM_BASE = 0
MEM_SLOT = 32 * KB
P_BASE = 96 * KB
P_SLOT = 64 * KB
U_BASE = 288 * KB
U_SLOT = 640 * KB
U2_BASE = 2 * MB + 64 * KB
PT_BASE = 4 * MB
PT_SLOT = 80 * KB
XN_BASE = 8 * MB
KX_BASE = 16 * MB
QX_BASE = 48 * MB
VO_BASE = 80 * MB
G_BASE = 168 * MB
HID_BASE = 176 * MB
FLAG_BASE = 192 * MB
WS_SIZE = 256 * MB

def sigma(gb, j):
    return 16 * (gb >> 1) + 4 * (gb & 1) + (j & 3) + 8 * (j >> 2)
def klocal_of_token(tau):
    gb = 2 * (tau >> 4) + ((tau >> 2) & 1)
    j = (tau & 3) + 4 * ((tau >> 3) & 1)
    return 8 * gb + j
def kpos(kl):
    return kl ^ (12 if (kl & 16) else 0)
RHO = [0, 1, 4, 5, 2, 3, 6, 7]
```

```python
from asmlib import *
import gen_chain, gen_gemm, sys
NAME = 'recurrent_scan__memory_aug_recurrent_mem_tr__glu_gated_glu__prompt'
ai = Asm(); gen_gemm.gen_init(ai)
A = gen_gemm.gen_gemm_kernel('A', 2); B = gen_gemm.gen_gemm_kernel('B', 1)
P = dict(prof=0, par=-1, plainP=0, plainM=0, steps=64)
C = gen_chain.gen_chain_kernel(P)
hdr = open('cdna_kernels/' + NAME + '.s.ref').read().split('; Override launch')[0]
s = hdr
s += '; @launch kernel=init_kernel grid=(128,1,1) block=(256,1,1) lds=0\n'
s += '; @launch kernel=gemma_kernel grid=(256,1,1) block=(256,1,1) lds=98304\n'
s += '; @launch kernel=gemmb_kernel grid=(256,1,1) block=(256,1,1) lds=98304\n'
s += '; @launch kernel=chain_kernel grid=(256,1,1) block=(256,1,1) lds=163840\n'
s += '.amdgcn_target "amdgcn-amd-amdhsa--gfx950"\n.text\n'
s += head('init_kernel') + ai.text() + head('gemma_kernel') + A.text() + head('gemmb_kernel') + B.text() + head('chain_kernel') + C.text()
s += '.section .rodata,"a"\n' + desc('init_kernel', 128, 102, 128) + desc('gemma_kernel') + desc('gemmb_kernel') + desc('chain_kernel')
out = sys.argv[1] if len(sys.argv) > 1 else 'cdna_kernels/' + NAME + '.s'
open(out, 'w').write(s)
print(len(s), 'bytes')
```

```python
from asmlib import *
from layout import *

LOG2E = 1.4426950408889634
SC = (192 ** -0.5) * LOG2E
import struct
def f32hex(x): return '0x%08x' % struct.unpack('<I', struct.pack('<f', x))[0]

class Lgkm:
    def __init__(self, a): self.a = a; self.q = []; self.seen = set()
    def issue(self, text, tag):
        self.seen.add(tag)
        if len(self.q) >= 15:
            self.a('s_waitcnt lgkmcnt(10)'); self.q = self.q[len(self.q) - 10:]
        self.a(text); self.q.append(tag)
    def need(self, tag):
        assert tag in self.seen, ('lds op never issued', tag)
        if tag not in self.q: return
        i = self.q.index(tag)
        n = len(self.q) - 1 - i
        self.a(f's_waitcnt lgkmcnt({n})')
        self.q = self.q[i + 1:]
    def drain(self):
        if self.q: self.a('s_waitcnt lgkmcnt(0)'); self.q = []

SRD_WS = 's[4:7]'; SRD_A = 's[8:11]'; SRD_B = 's[12:15]'; SRD_X = 's[16:19]'; SRD_O = 's[20:23]'
sW = 's24'; sIDX = 's25'; sSTEP = 's26'; sPAR = 's27'
sMEM = ['s28', 's29', 's30']; sP = ['s31', 's32', 's33']; sU = ['s34', 's35', 's36']; sPT = ['s37', 's38', 's39']
sT0, sT1, sT2, sT3 = 's40', 's41', 's42', 's43'

def mk_srd(a, srd_lo, ptr_lo, size):
    a(f's_mov_b32 s{srd_lo}, s{ptr_lo}')
    a(f's_and_b32 s{srd_lo+1}, s{ptr_lo+1}, 0xffff')
    a(f's_mov_b32 s{srd_lo+2}, {size}')
    a(f's_mov_b32 s{srd_lo+3}, 0x20000')

def rotate(a, r):
    a(f's_mov_b32 {sT0}, {r[0]}'); a(f's_mov_b32 {r[0]}, {r[1]}'); a(f's_mov_b32 {r[1]}, {r[2]}'); a(f's_mov_b32 {r[2]}, {sT0}')

def ring_init(a):
    for i in range(3):
        a(f's_add_u32 {sMEM[i]}, {sPAR}, {MEM_BASE + i*MEM_SLOT}')
        a(f's_add_u32 {sP[i]}, {sPAR}, {P_BASE + i*P_SLOT}')
        if i < 2: a(f's_add_u32 {sU[i]}, {sPAR}, {U_BASE + i*U_SLOT}')
        else: a(f's_add_u32 {sU[i]}, s83, {U2_BASE}')
        a(f's_mov_b32 {sPT[i]}, {PT_BASE + i*PT_SLOT}')

def poll_masked(a, name, loads, tmp, timeout_label, first_exec=None, sleep=0):
    n = len(loads)
    for i, (d, nr, txt) in enumerate(loads):
        if first_exec and first_exec[i]: a(f's_mov_b64 exec, {first_exec[i]}')
        a(txt)
        if first_exec and first_exec[i]: a('s_mov_b64 exec, -1')
    a(f's_mov_b32 {sT2}, 0')
    a.label(f'{name}_loop')
    a(f's_mov_b64 s[44:45], 0')
    for i, (d, nr, txt) in enumerate(loads):
        a(f's_waitcnt vmcnt({n-1})')
        if nr == 4:
            a(f'v_max3_u32 v{tmp}, v{d}, v{d+1}, v{d+2}')
            a(f'v_max_u32 v{tmp}, v{tmp}, v{d+3}')
        else:
            a(f'v_max_u32 v{tmp}, v{d}, v{d+1}')
        if first_exec and first_exec[i]: a(f's_mov_b64 exec, {first_exec[i]}')
        a(f'v_cmp_eq_u32 vcc, -1, v{tmp}')
        a('s_or_b64 s[44:45], s[44:45], vcc')
        a('s_mov_b64 exec, vcc')
        a(txt)
        a('s_mov_b64 exec, -1')
    a('s_cmp_eq_u64 s[44:45], 0')
    a(f's_cbranch_scc1 {name}_done')
    if sleep: a(f's_sleep {sleep}')
    a(f's_add_u32 {sT2}, {sT2}, 1')
    a(f's_cmp_lt_u32 {sT2}, 0x100000')
    a(f's_cbranch_scc1 {name}_loop')
    a(f's_branch {timeout_label}')
    a.label(f'{name}_done')
    a('s_waitcnt vmcnt(0)')

def wait_flag(a, tag, sidx, base, target, vt, sx='s46', sleep=0):
    a(f's_lshl_b32 s47, {sidx}, 7'); a(f's_add_u32 s47, s47, {flag(base)}')
    a(f's_mov_b32 {sx}, 0'); a(f'v_mov_b32 v{vt+1}, 0')
    a.label(f'{tag}_wf')
    a(f'buffer_load_dword v{vt}, off, {SRD_WS}, s47 sc1'); a('s_waitcnt vmcnt(0)')
    a(f'v_readfirstlane_b32 s45, v{vt}')
    a(f's_cmp_ge_u32 s45, {target}'); a(f's_cbranch_scc1 {tag}_wd')
    if sleep: a(f's_sleep {sleep}')
    a(f's_add_u32 {sx}, {sx}, 1'); a(f's_cmp_lt_u32 {sx}, 0x200000'); a(f's_cbranch_scc1 {tag}_wf')
    a('s_branch timeout')
    a.label(f'{tag}_wd')

def prof(a, slot, on):
    if not on: return
    if on == 1:
        if slot < 4: a(f's_memrealtime s[{88+2*slot}:{89+2*slot}]')
    else:
        a(f's_memtime s[{88+2*slot}:{89+2*slot}]')
def prof_flush(a, on, reg=60):
    if not on: return
    a('s_waitcnt lgkmcnt(0)')
    n = 4 if on == 1 else 6
    for i in range(n): a(f'v_mov_b32 v{reg+i}, s{88+2*i}')
    if on == 2:
        a('s_memrealtime s[46:47]'); a('s_waitcnt lgkmcnt(0)'); a(f'v_mov_b32 v{reg+6}, s46'); a(f'v_mov_b32 v{reg+7}, 0')
    a(f's_lshl_b32 {sT1}, {sSTEP}, 5')
    a(f's_add_u32 {sT1}, {sT1}, s48')
    a('s_mov_b64 exec, 1')
    a(f'buffer_store_dwordx4 v[{reg}:{reg+3}], off, {SRD_WS}, {sT1}')
    if on == 2: a(f'buffer_store_dwordx4 v[{reg+4}:{reg+7}], off, {SRD_WS}, {sT1} offset:16')
    a('s_mov_b64 exec, -1')

def load_weights(a, units, vtr):
    AREA = 36 * 1024
    alloc = []; pos = 0
    for u in units:
        sz = 64 * u['RB']
        if pos + sz > AREA: pos = 0
        alloc.append((pos, sz)); pos += sz
    issued = 0; inflight = []
    def overlaps(i, j):
        (p, s), (q, t) = alloc[i], alloc[j]
        return p < q + t and q < p + s
    def issue(i):
        u = units[i]
        for t in u['soff']: a(t)
        a(f's_add_u32 m0, s49, {alloc[i][0]}')
        for k, vo in enumerate(u['voffs']):
            if k: a('s_add_u32 m0, m0, 1024')
            else: a('s_nop 0')
            a(f'buffer_load_dwordx4 v{vo}, {u["srd"]}, {sT3} offen lds')
    def n_after(i):
        return sum(len(units[j]['voffs']) for j in inflight if j > i)
    done = 0
    while done < len(units):
        while issued < len(units) and not any(overlaps(issued, j) for j in inflight) and \
              sum(len(units[j]['voffs']) for j in inflight) + len(units[issued]['voffs']) <= 60:
            issue(issued); inflight.append(issued); issued += 1
        i = inflight[0]
        a(f's_waitcnt vmcnt({n_after(i)})')
        u = units[i]; RB = u['RB']; cnt = 0
        for tl, (cls, base) in enumerate(u['dests']):
            for q, rowoff in enumerate((0, 4, 32, 36)):
                off = alloc[i][0] + rowoff * RB + tl * 32
                a(f'ds_read_b64_tr_b16 {cls}[{base+2*q}:{base+2*q+1}], v{vtr[RB]} offset:{off}')
                cnt += 1
                if cnt % 12 == 0: a('s_waitcnt lgkmcnt(0)')
        a('s_waitcnt lgkmcnt(0)')
        inflight.pop(0); done += 1

def dma_voffs(a, T, nregs, base, stride, vl, vt):
    per = 2 * T
    magic = {6: 43691, 10: 52429}[per]; sh = {6: 18, 10: 19}[per]
    for i in range(nregs):
        a(f'v_add_u32 v{vt}, {i*64}, v{vl}')
        a(f'v_mul_u32_u24 v{vt+1}, {magic}, v{vt}')
        a(f'v_lshrrev_b32 v{vt+1}, {sh}, v{vt+1}')
        a(f'v_mul_u32_u24 v{vt+2}, {per}, v{vt+1}')
        a(f'v_sub_u32 v{vt+2}, v{vt}, v{vt+2}')
        a(f'v_lshlrev_b32 v{vt+2}, 4, v{vt+2}')
        a(f'v_mul_u32_u24 v{vt+1}, {stride}, v{vt+1}')
        a(f'v_add_u32 v{base+i}, v{vt+1}, v{vt+2}')

def tr_base(a, dst, RB, vl, vt):
    a(f'v_lshrrev_b32 v{vt}, 4, v{vl}')
    a(f'v_lshlrev_b32 v{vt}, 3, v{vt}')
    a(f'v_bfe_u32 v{vt+1}, v{vl}, 2, 2')
    a(f'v_add_u32 v{vt}, v{vt}, v{vt+1}')
    a(f'v_mul_u32_u24 v{vt}, {RB}, v{vt}')
    a(f'v_and_b32 v{vt+1}, 3, v{vl}')
    a(f'v_lshlrev_b32 v{vt+1}, 3, v{vt+1}')
    a(f'v_add3_u32 v{dst}, v{vt}, v{vt+1}, s49')

def place_tiles(order, lds_set):
    loc = {}; na = 0; nv = 0; nl = 0
    for key in order:
        if key in lds_set:
            loc[key] = ('l', nl); nl += 1
        elif na < 32:
            loc[key] = ('a', 8 * na); na += 1
        else:
            loc[key] = ('v', 96 + 8 * nv); nv += 1
    assert na == 32 and nv == 20 and nl == 8
    return loc

WL_BASE = 65536

def finish_lds_tiles(a, loc, tmpbase, vaddr):
    a('s_barrier')
    for key, (cls, n) in loc.items():
        if cls == 'l':
            b = tmpbase + 8 * n
            a(f'ds_write_b128 v{vaddr}, v[{b}:{b+3}] offset:{n*2048}')
            a(f'ds_write_b128 v{vaddr}, v[{b+4}:{b+7}] offset:{n*2048+1024}')
    a('s_waitcnt lgkmcnt(0)')

def gemv(a, L, nchunks, ntiles, loc, keyf, areg, accreg, vidx, vwl, wtmp, a_issue, a_tags):
    seq = [(c, t) for c in range(nchunks) for t in range(ntiles)]
    ldsl = [k for k in seq if loc[keyf(*k)][0] == 'l']
    pend = list(ldsl); tmpuse = {}
    def issue_w(k, ti):
        n = loc[keyf(*k)][1]; b = wtmp + 8 * ti
        L.issue(f'ds_read_b128 v[{b}:{b+3}], v{vwl} offset:{n*2048}', ('w', k, 0))
        L.issue(f'ds_read_b128 v[{b+4}:{b+7}], v{vwl} offset:{n*2048+1024}', ('w', k, 1))
        tmpuse[k] = ti
    nextti = 0; busy = [None, None]
    for si, (c, t) in enumerate(seq):
        if pend:
            k = pend[0]
            if seq.index(k) - si <= 9 and busy[nextti] is None:
                issue_w(k, nextti); busy[nextti] = k; nextti ^= 1; pend.pop(0)
        if t == 0:
            for tg in a_tags(c): L.need(tg)
        cls, base = loc[keyf(c, t)]
        acc = accreg + 4 * t
        if cls == 'l':
            L.need(('w', (c, t), 1))
            ti = tmpuse[(c, t)]; b = wtmp + 8 * ti
            a(f'v_smfmac_f32_16x16x64_bf16 v[{acc}:{acc+3}], v[{areg(c)}:{areg(c)+3}], v[{b}:{b+7}], v{vidx}')
            busy[ti] = None
        else:
            a(f'v_smfmac_f32_16x16x64_bf16 v[{acc}:{acc+3}], v[{areg(c)}:{areg(c)+3}], {cls}[{base}:{base+7}], v{vidx}')

def mem_poll_setup(a, vl, v0):
    a(f'v_lshlrev_b32 v1, 4, v{vl}')
    a(f's_lshl_b32 {sT0}, {sW}, 10')
    a(f'v_add_u32 v2, {sT0}, v1')
    a(f'v_add_u32 v3, 4096, v2')
    a(f's_lshl_b32 {sT1}, {sW}, 9')
    a(f's_add_u32 {sT1}, {sT1}, 16384')
    a(f'v_add_u32 v4, {sT1}, v1')
    a(f'v_mov_b32 v6, v2')
    a(f's_lshl_b32 {sT1}, {sW}, 9')
    a(f's_add_u32 {sT1}, {sT1}, 8192')
    a(f'v_add_u32 v7, {sT1}, v1')
    a(f'v_and_b32 v5, 8, v{vl}')
    a(f'v_cmp_eq_u32 vcc, 0, v5')
    a(f'v_mov_b32 v5, 0xeeeeeeee')
    a(f'v_mov_b32 v8, 0x44444444')
    a(f'v_cndmask_b32 v5, v5, v8, vcc')

LOW32 = 's[50:51]'
def mem_poll(a, name, pd, tmo, sleep=0, pf=0):
    loads = [(pd, 4, f'buffer_load_dwordx4 v[{pd}:{pd+3}], v2, {SRD_WS}, {sMEM[0]} offen sc1'),
             (pd+4, 4, f'buffer_load_dwordx4 v[{pd+4}:{pd+7}], v3, {SRD_WS}, {sMEM[0]} offen sc1'),
             (pd+8, 4, f'buffer_load_dwordx4 v[{pd+8}:{pd+11}], v4, {SRD_WS}, {sMEM[0]} offen sc1')]
    poll_masked(a, name, loads, 9, tmo, first_exec=[None, None, LOW32], sleep=sleep)
    prof(a, 0, pf)
    a(f'ds_write_b128 v6, v[{pd}:{pd+3}]')
    a(f'ds_write_b128 v6, v[{pd+4}:{pd+7}] offset:4096')
    a(f's_mov_b64 exec, {LOW32}')
    a(f'ds_write_b128 v7, v[{pd+8}:{pd+11}]')
    a('s_mov_b64 exec, -1')
    a('s_waitcnt lgkmcnt(0)')
    a('s_barrier')
    prof(a, 3, pf)

def store_flag(plain): return '' if plain else ' sc1'

def gen_qk(a, P):
    vl = 10
    MEMB = 0; XB = 10240; KXB = 16384; QXB = 40960
    order = [(c, t) for c in range(10) for t in range(6)]
    lds_set = {(c, t) for c in (6, 7, 8, 9) for t in (4, 5)}
    loc = place_tiles(order, lds_set)
    a(f's_mul_i32 s49, {sW}, {36*1024}')
    dma_voffs(a, 3, 6, 16, 12288, vl, 24)
    tr_base(a, 22, 96, vl, 24)
    units = []
    TMP = 32
    for c in range(10):
        for m in range(2):
            dests = []
            for tl in range(3):
                cls, b = loc[(c, 3*m + tl)]
                dests.append(('v', TMP + 8*b) if cls == 'l' else (cls, b))
            soff = [f's_mul_i32 {sT3}, {sIDX}, 384', f's_mul_i32 {sT2}, {sW}, 96', f's_add_u32 {sT3}, {sT3}, {sT2}',
                    f's_add_u32 {sT3}, {sT3}, {64*c*12288}']
            units.append(dict(srd=SRD_A if m == 0 else SRD_B, soff=soff, T=3, voffs=list(range(16, 22)), dests=dests, RB=96))
    load_weights(a, units, {96: 22})
    a(f's_lshl_b32 {sT0}, {sW}, 14')
    a(f's_add_u32 {sT0}, {sT0}, {WL_BASE}')
    a(f'v_lshlrev_b32 v11, 4, v{vl}')
    a(f'v_add_u32 v11, {sT0}, v11')
    finish_lds_tiles(a, loc, TMP, 11)
    get_parity(a, 'qk')
    mem_poll_setup(a, vl, 0)
    a(f'v_and_b32 v16, 15, v{vl}')
    a(f'v_lshrrev_b32 v17, 4, v{vl}')
    a(f'v_lshrrev_b32 v18, 2, v16')
    a(f'v_xor_b32 v18, v17, v18')
    a(f'v_lshlrev_b32 v18, 3, v18')
    a(f'v_lshlrev_b32 v19, 5, v16')
    a(f's_mul_i32 {sT0}, {sW}, 1536')
    a(f's_add_u32 {sT0}, {sT0}, {XB}')
    a(f'v_add3_u32 v12, v18, v19, {sT0}')
    a(f'v_bfe_u32 v18, v{vl}, 2, 2')
    a(f'v_lshl_add_u32 v18, v17, 2, v18')
    a(f'v_lshlrev_b32 v18, 5, v18')
    a(f'v_and_b32 v19, 3, v{vl}')
    a(f'v_xor_b32 v19, v19, v17')
    a(f'v_lshlrev_b32 v19, 3, v19')
    a(f'v_add_u32 v13, v18, v19')
    a(f'v_add_u32 v13, {XB}, v13')
    a(f'v_lshrrev_b32 v18, 2, v16')
    a(f'v_and_b32 v19, 3, v16')
    a(f'v_lshrrev_b32 v20, 1, v18'); a(f'v_lshlrev_b32 v20, 4, v20')
    a(f'v_lshrrev_b32 v21, 1, v19'); a(f'v_lshl_add_u32 v20, v21, 2, v20')
    a(f'v_and_b32 v21, 1, v18'); a(f'v_lshl_add_u32 v20, v21, 1, v20')
    a(f'v_and_b32 v21, 1, v19'); a(f'v_add_u32 v20, v20, v21')
    a(f'v_lshl_add_u32 v21, v18, 3, v19')
    a(f's_cmp_eq_u32 {sW}, 0')
    a(f's_cselect_b64 vcc, -1, 0')
    a(f'v_cndmask_b32 v20, v21, v20, vcc')
    a(f'v_and_b32 v21, 16, v20'); a(f'v_lshrrev_b32 v22, 2, v21'); a(f'v_lshrrev_b32 v21, 1, v21')
    a(f'v_xor_b32 v20, v20, v21'); a(f'v_xor_b32 v20, v20, v22')
    a(f'v_lshlrev_b32 v20, 4, v20')
    a(f'v_lshl_add_u32 v14, v17, 9, v20')
    a(f's_cmp_eq_u32 {sW}, 0'); a(f's_cselect_b32 s52, 128, 64')
    a(f's_sub_u32 {sT0}, {sW}, 1'); a(f's_lshl_b32 {sT0}, {sT0}, 4')
    a(f'v_add_u32 v18, {sT0}, v16')
    for t in range(2):
        for j in range(4):
            a(f'v_lshrrev_b32 v19, 1, v17'); a(f'v_lshlrev_b32 v19, 4, v19')
            a(f'v_and_b32 v20, 1, v17'); a(f'v_lshl_add_u32 v19, v20, 2, v19')
            a(f'v_add_u32 v19, {8*t + j}, v19')
            r = 54 + 2 * (4*t + j)
            a(f'v_cmp_le_u32 s[{r}:{r+1}], v19, v18')
    a(f's_lshr_b32 {sT0}, {sIDX}, 3'); a(f's_lshl_b32 {sT0}, {sT0}, 14')
    a(f's_and_b32 {sT1}, {sIDX}, 7'); a(f's_lshl_b32 {sT1}, {sT1}, 10'); a(f's_add_u32 s53, {sT0}, {sT1}')
    a(f's_cmp_eq_u32 {sW}, 0'); a('s_cbranch_scc0 qk_su1')
    a(f'v_lshlrev_b32 v18, 7, v17'); a(f'v_lshl_add_u32 v18, v16, 4, v18'); a(f'v_add_u32 v0, s53, v18')
    a(f'v_and_b32 v18, 1, v17'); a(f'v_lshlrev_b32 v18, 6, v18'); a(f'v_lshl_add_u32 v18, v16, 3, v18')
    a(f'v_add_u32 v18, 512, v18'); a(f'v_add_u32 v8, s53, v18')
    a('s_branch qk_su3')
    a.label('qk_su1')
    a(f's_mul_i32 {sT0}, {sIDX}, 2560')
    a(f's_cmp_eq_u32 {sW}, 3'); a('s_cbranch_scc1 qk_su2')
    a(f's_sub_u32 {sT1}, {sW}, 1'); a(f's_lshl_b32 {sT2}, {sT1}, 10'); a(f's_add_u32 {sT2}, {sT2}, {sT0}')
    a(f'v_add_u32 v0, {sT2}, v1')
    a(f's_lshl_b32 {sT2}, {sT1}, 8'); a(f's_add_u32 {sT2}, {sT2}, {sT0}'); a(f's_add_u32 {sT2}, {sT2}, 2048')
    a(f'v_lshlrev_b32 v18, 4, v16'); a(f'v_add_u32 v8, {sT2}, v18')
    a('s_branch qk_su3')
    a.label('qk_su2')
    a(f'v_add_u32 v0, s53, v1')
    a(f'v_add_u32 v8, {sT0}, v1')
    a.label('qk_su3')
    a(f's_mov_b32 s70, 0x00ff00ff'); a(f's_mov_b32 s71, 0x00ff00ff')
    a(f's_mov_b32 s72, 0'); a(f's_mov_b32 s73, 0x00ff00ff')
    a(f's_mov_b32 s74, 0'); a(f's_mov_b32 s75, -1')
    a(f's_mov_b32 s76, 0'); a(f's_mov_b32 s77, 0x0000ffff')
    a(f's_mov_b32 s78, -1'); a(f's_mov_b32 s79, 0xff')
    a(f's_mov_b32 s80, {f32hex(SC)}')
    a(f's_mul_i32 s81, {sIDX}, 12288')
    a(f's_mov_b32 s82, 0')
    def kq_dma(bufoff):
        for (base, gbase) in ((KXB, KX_BASE), (QXB, QX_BASE)):
            a(f's_add_u32 {sT3}, s81, {gbase}')
            a(f's_add_u32 m0, {bufoff}, {base}')
            for i in range(12):
                if i: a('s_add_u32 m0, m0, 1024'); a(f's_add_u32 {sT3}, {sT3}, 1024')
                else: a('s_nop 0')
                a(f'buffer_load_dwordx4 v1, {SRD_WS}, {sT3} offen sc1 lds')
    a(f's_cmp_lg_u32 {sW}, 3'); a('s_cbranch_scc1 qk_nodma0')
    kq_dma('s82')
    a.label('qk_nodma0')
    a(f's_mov_b32 {sSTEP}, 0')
    ACC = 16; AF = 40; WT = 80
    a.label('qk_step')
    for i in range(24): a(f'v_mov_b32 v{ACC+i}, 0')
    mem_poll(a, 'qk_poll', AF, 'timeout', P.get('sleepM', 0), P['prof'])
    L = Lgkm(a)
    for c in range(10):
        L.issue(f'ds_read_b128 v[{AF+4*c}:{AF+4*c+3}], v1 offset:{MEMB + c*1024}', ('A', c))
    gemv(a, L, 10, 6, loc, lambda c, t: (c, t), lambda c: AF + 4*c, ACC, 5, 11, WT, None, lambda c: [('A', c)])
    prof(a, 4, P['prof'])
    for i in range(3):
        q = ACC + 4*i; k = ACC + 12 + 4*i
        for j in range(4): a(f'v_permlane32_swap_b32 v{q+j}, v{k+j}')
        for j in range(4): a(f'v_add_f32 v{q+j}, v{q+j}, v{k+j}')
        a(f'v_cvt_pk_bf16_f32 v{k}, v{q}, v{q+1}')
        a(f'v_cvt_pk_bf16_f32 v{k+1}, v{q+2}, v{q+3}')
        a(f'ds_write_b64 v12, v[{k}:{k+1}] offset:{i*512}')
    a('s_waitcnt lgkmcnt(0)')
    a('s_barrier')
    prof(a, 1, P['prof'])
    a(f's_cmp_eq_u32 {sW}, 3'); a('s_cbranch_scc1 qk_w3')
    a(f'v_add_u32 v84, s82, v14'); a(f'v_add_u32 v84, {KXB}, v84'); a(f'v_xor_b32 v85, s52, v14'); a(f'v_add_u32 v85, s82, v85'); a(f'v_add_u32 v85, {KXB}, v85')
    SA = 16
    def scores(token):
        L = Lgkm(a)
        ST = [28, 48, 64]
        def issue(ks):
            b = ST[ks % 3]
            L.issue(f'ds_read_b64_tr_b16 v[{b}:{b+1}], v13 offset:{ks*1024}', ('x0', ks))
            L.issue(f'ds_read_b64_tr_b16 v[{b+2}:{b+3}], v13 offset:{ks*1024+512}', ('x1', ks))
            if token: L.issue(f'ds_read_b128 v[{b+4}:{b+7}], v86 offset:{ks*2048}', ('q', ks))
            L.issue(f'ds_read_b128 v[{b+8}:{b+11}], v84 offset:{ks*2048}', ('k0', ks))
            L.issue(f'ds_read_b128 v[{b+12}:{b+15}], v85 offset:{ks*2048}', ('k1', ks))
        for ks in range(3): issue(ks)
        for ks in range(6):
            b = ST[ks % 3]; B = b + 4 if token else b
            c0 = lambda r: '0' if ks == 0 else f'v[{r}:{r+3}]'
            L.need(('q', ks) if token else ('x1', ks))
            a(f'v_mfma_f32_16x16x32_bf16 v[{SA}:{SA+3}], v[{b}:{b+3}], v[{B}:{B+3}], {c0(SA)}')
            L.need(('k0', ks))
            a(f'v_mfma_f32_16x16x32_bf16 v[{SA+4}:{SA+7}], v[{b+8}:{b+11}], v[{B}:{B+3}], {c0(SA+4)}')
            L.need(('k1', ks))
            a(f'v_mfma_f32_16x16x32_bf16 v[{SA+8}:{SA+11}], v[{b+12}:{b+15}], v[{B}:{B+3}], {c0(SA+8)}')
            if ks + 3 < 6: issue(ks + 3)
    def softmax(token):
        NEG = 28
        a(f'v_mov_b32 v{NEG}, 0xff800000')
        for j in range(4): a(f'v_cndmask_b32 v{SA+j}, v{NEG}, v{SA+j}, s[74:75]')
        if token:
            for t in range(2):
                for j in range(4):
                    r = 54 + 2*(4*t + j)
                    a(f'v_cndmask_b32 v{SA+4+4*t+j}, v{NEG}, v{SA+4+4*t+j}, s[{r}:{r+1}]')
        m = 29; t0 = 30
        a(f'v_max3_f32 v{m}, v{SA}, v{SA+1}, v{SA+2}')
        a(f'v_max3_f32 v{t0}, v{SA+3}, v{SA+4}, v{SA+5}')
        a(f'v_max3_f32 v{m}, v{m}, v{SA+6}, v{SA+7}')
        a(f'v_max3_f32 v{t0}, v{t0}, v{SA+8}, v{SA+9}')
        a(f'v_max3_f32 v{m}, v{m}, v{SA+10}, v{SA+11}')
        a(f'v_max_f32 v{m}, v{m}, v{t0}')
        def xred(op):
            for sw in ('v_permlane16_swap_b32', 'v_permlane32_swap_b32'):
                a(f'v_mov_b32 v{t0}, v{m}')
                a(f'{sw} v{t0}, v{m}')
                a(f'{op} v{m}, v{m}, v{t0}')
        xred('v_max_f32')
        a(f'v_mul_f32 v{m}, s80, v{m}')
        for i in range(12): a(f'v_fma_f32 v{SA+i}, v{SA+i}, s80, -v{m}')
        for i in range(12): a(f'v_exp_f32 v{SA+i}, v{SA+i}')
        a(f'v_add_f32 v{m}, v{SA}, v{SA+1}')
        a(f'v_add_f32 v{t0}, v{SA+2}, v{SA+3}')
        for i in range(4, 12, 2):
            a(f'v_add_f32 v{m}, v{m}, v{SA+i}')
            a(f'v_add_f32 v{t0}, v{t0}, v{SA+i+1}')
        a(f'v_add_f32 v{m}, v{m}, v{t0}')
        xred('v_add_f32')
        a(f'v_rcp_f32 v{m}, v{m}')
        for i in range(12): a(f'v_mul_f32 v{SA+i}, v{SA+i}, v{m}')
        for i in range(4): a(f'v_cvt_pk_bf16_f32 v{32+i}, v{SA+4+2*i}, v{SA+5+2*i}')
        a(f'v_cvt_pk_bf16_f32 v36, v{SA}, v{SA+1}')
        a(f'v_cvt_pk_bf16_f32 v38, v{SA+2}, v{SA+3}')
        for r in (32, 33, 34, 35, 36, 38): a(f'v_min_u32 v{r}, -2, v{r}')
    a(f's_cmp_eq_u32 {sW}, 0'); a('s_cbranch_scc0 qk_tok')
    scores(False)
    prof(a, 5, P['prof'])
    softmax(False)
    a('s_mov_b64 exec, s[70:71]')
    a(f'buffer_store_dwordx4 v[32:35], v0, {SRD_WS}, {sP[0]} offen{store_flag(P["plainP"])}')
    a('v_mov_b32 v37, v38')
    a('s_mov_b64 exec, s[72:73]')
    a(f'buffer_store_dwordx2 v[36:37], v8, {SRD_WS}, {sP[0]} offen{store_flag(P["plainP"])}')
    a('s_mov_b64 exec, -1')
    prof(a, 2, P['prof'])
    prof_flush(a, P['prof'])
    a('s_branch qk_end')
    a.label('qk_tok')
    a(f's_sub_u32 {sT0}, {sW}, 1'); a(f's_lshl_b32 {sT0}, {sT0}, 10'); a(f's_add_u32 {sT0}, {sT0}, s82'); a(f's_add_u32 {sT0}, {sT0}, {QXB}')
    a(f'v_add_u32 v86, {sT0}, v1')
    scores(True)
    softmax(True)
    a(f'buffer_store_dwordx4 v[32:35], v0, {SRD_WS}, {sPT[0]} offen sc1')
    a('v_mov_b32 v37, 0'); a('v_mov_b32 v39, 0')
    a('v_permlane16_swap_b32 v36, v37')
    a('v_permlane16_swap_b32 v38, v39')
    a('s_mov_b64 exec, s[76:77]')
    a(f'buffer_store_dwordx4 v[36:39], v8, {SRD_WS}, {sPT[0]} offen sc1')
    a('s_mov_b64 exec, -1')
    a('s_branch qk_end')
    a.label('qk_w3')
    a('v_mov_b32 v32, -1'); a('v_mov_b32 v33, -1'); a('v_mov_b32 v34, -1'); a('v_mov_b32 v35, -1')
    a('s_mov_b64 exec, s[78:79]')
    a(f'buffer_store_dwordx4 v[32:35], v0, {SRD_WS}, {sP[2]} offen{store_flag(P["plainP"])}')
    a('s_mov_b64 exec, -1')
    a(f'buffer_store_dwordx4 v[32:35], v8, {SRD_WS}, {sPT[1]} offen sc1')
    a(f'buffer_store_dwordx4 v[32:35], v8, {SRD_WS}, {sPT[1]} offen offset:1024 sc1')
    a(f's_mov_b64 exec, {LOW32}')
    a(f'buffer_store_dwordx4 v[32:35], v8, {SRD_WS}, {sPT[1]} offen offset:2048 sc1')
    a('s_mov_b64 exec, -1')
    a(f's_cmp_ge_u32 {sSTEP}, 63'); a('s_cbranch_scc1 qk_end')
    a(f's_add_u32 s81, s81, {32*12288}')
    a(f's_xor_b32 {sT1}, s82, 12288')
    kq_dma(sT1)
    a.label('qk_end')
    a(f's_xor_b32 s82, s82, 12288')
    rotate(a, sMEM); rotate(a, sP); rotate(a, sPT)
    a(f's_add_u32 {sSTEP}, {sSTEP}, 1')
    a(f's_cmp_lt_u32 {sSTEP}, {P["steps"]}')
    a('s_cbranch_scc1 qk_step')
    a('s_branch done')

def gen_vo(a, P):
    vl = 10
    MEMB = 0; YB = 10240
    keysV = [('v', c, t) for c in range(10) for t in range(3)]
    keysO = [('o', c, t) for c in range(3) for t in range(10)]
    lds_set = {('v', c, 2) for c in (6, 7, 8, 9)} | {('o', 2, t) for t in (3, 5, 7, 9)}
    loc = place_tiles(keysV + keysO, lds_set)
    a(f's_mul_i32 s49, {sW}, {36*1024}')
    dma_voffs(a, 3, 6, 0 + 12, 12288, vl, 28)
    dma_voffs(a, 5, 10, 18, 1280, vl, 28)
    tr_base(a, 8, 96, vl, 28)
    tr_base(a, 9, 160, vl, 28)
    TMP = 32
    units = []
    for c in range(10):
        dests = []
        for tl in range(3):
            cls, b = loc[('v', c, tl)]
            dests.append(('v', TMP + 8*b) if cls == 'l' else (cls, b))
        soff = [f's_mul_i32 {sT3}, {sIDX}, 384', f's_mul_i32 {sT2}, {sW}, 96', f's_add_u32 {sT3}, {sT3}, {sT2}', f's_add_u32 {sT3}, {sT3}, {64*c*12288}']
        units.append(dict(srd=SRD_A, soff=soff, T=3, voffs=list(range(12, 18)), dests=dests, RB=96))
    for c in range(3):
        for u2 in range(2):
            dests = []
            for tl in range(5):
                cls, b = loc[('o', c, 5*u2 + tl)]
                dests.append(('v', TMP + 8*b) if cls == 'l' else (cls, b))
            soff = [f's_mul_i32 {sT3}, {sIDX}, {192*1280}', f's_mul_i32 {sT2}, {sW}, 320', f's_add_u32 {sT3}, {sT3}, {sT2}',
                    f's_add_u32 {sT3}, {sT3}, {64*c*1280 + 160*u2}']
            units.append(dict(srd=SRD_B, soff=soff, T=5, voffs=list(range(18, 28)), dests=dests, RB=160))
    load_weights(a, units, {96: 8, 160: 9})
    a(f's_lshl_b32 {sT0}, {sW}, 14'); a(f's_add_u32 {sT0}, {sT0}, {WL_BASE}')
    a(f'v_lshlrev_b32 v11, 4, v{vl}'); a(f'v_add_u32 v11, {sT0}, v11')
    finish_lds_tiles(a, loc, TMP, 11)
    get_parity(a, 'vo')
    mem_poll_setup(a, vl, 0)
    a(f'v_and_b32 v16, 15, v{vl}'); a(f'v_lshrrev_b32 v17, 4, v{vl}')
    a(f'v_lshlrev_b32 v18, 4, v16')
    a(f'v_and_b32 v19, 1, v17'); a(f'v_lshl_add_u32 v18, v19, 3, v18')
    a(f'v_lshrrev_b32 v19, 1, v17'); a(f'v_lshl_add_u32 v18, v19, 8, v18')
    a(f's_mul_i32 {sT0}, {sW}, 768'); a(f's_add_u32 {sT0}, {sT0}, {YB}')
    a(f'v_add_u32 v12, {sT0}, v18')
    a(f'v_bfe_u32 v18, v{vl}, 2, 2'); a(f'v_and_b32 v19, 3, v{vl}')
    a(f'v_lshlrev_b32 v20, 4, v17')
    a(f'v_lshrrev_b32 v21, 1, v18'); a(f'v_lshl_add_u32 v20, v21, 2, v20')
    a(f'v_lshrrev_b32 v21, 1, v19'); a(f'v_lshl_add_u32 v20, v21, 1, v20')
    a(f'v_and_b32 v21, 1, v18'); a(f'v_add_u32 v20, v20, v21')
    a(f'v_lshlrev_b32 v20, 4, v20'); a(f'v_and_b32 v21, 1, v19'); a(f'v_lshl_add_u32 v20, v21, 3, v20')
    a(f'v_add_u32 v13, {YB}, v20')
    a(f'v_lshrrev_b32 v18, 1, v17'); a(f'v_lshlrev_b32 v18, 14, v18'); a(f'v_lshl_add_u32 v18, v16, 4, v18')
    a(f's_mul_i32 {sT0}, {sW}, {10*16384}'); a(f's_lshl_b32 {sT1}, {sIDX}, 8'); a(f's_add_u32 {sT0}, {sT0}, {sT1}')
    a(f'v_add_u32 v14, {sT0}, v18')
    a(f's_mov_b32 s70, 0x0000ffff'); a(f's_mov_b32 s71, 0x0000ffff')
    a(f's_mov_b32 {sSTEP}, 0')
    ACC = 16; AF = 56; WT = 80
    a.label('vo_step')
    for i in range(12): a(f'v_mov_b32 v{ACC+i}, 0')
    mem_poll(a, 'vo_poll', AF, 'timeout', P.get('sleepM', 0), P['prof'])
    L = Lgkm(a)
    ar = lambda c: AF + 4 * (c % 6)
    for c in range(6): L.issue(f'ds_read_b128 v[{ar(c)}:{ar(c)+3}], v1 offset:{MEMB + c*1024}', ('A', c))
    for j in range(4): a(f'v_mov_b32 v{48+j}, -1')
    a('s_mov_b64 exec, s[70:71]')
    for pr in range(5):
        a(f's_add_u32 {sT1}, {sU[2]}, {pr*2*16384}')
        if not P.get('noU'): a(f'buffer_store_dwordx4 v[48:51], v14, {SRD_WS}, {sT1} offen sc1')
    a('s_mov_b64 exec, -1')
    seq_loc = {(c, t): loc[('v', c, t)] for c in range(10) for t in range(3)}
    tmp_i = 0
    wq = [(c, 2) for c in (6, 7, 8, 9)]
    def issue_w(key, n, ti):
        b = WT + 8*ti
        L.issue(f'ds_read_b128 v[{b}:{b+3}], v11 offset:{n*2048}', ('w', key, 0))
        L.issue(f'ds_read_b128 v[{b+4}:{b+7}], v11 offset:{n*2048+1024}', ('w', key, 1))
    wt = {}
    for c in range(10):
        L.need(('A', c))
        for t in range(3):
            cls, base = seq_loc[(c, t)]; acc = ACC + 4*t
            if cls == 'l':
                L.need(('w', (c, t), 1)); b = WT + 8*wt[(c, t)]
                a(f'v_smfmac_f32_16x16x64_bf16 v[{acc}:{acc+3}], v[{ar(c)}:{ar(c)+3}], v[{b}:{b+7}], v5')
            else:
                a(f'v_smfmac_f32_16x16x64_bf16 v[{acc}:{acc+3}], v[{ar(c)}:{ar(c)+3}], {cls}[{base}:{base+7}], v5')
        if c + 6 < 10: L.issue(f'ds_read_b128 v[{ar(c)}:{ar(c)+3}], v1 offset:{MEMB + (c+6)*1024}', ('A', c + 6))
        if c in (4, 5, 6, 7):
            k = (c + 2, 2); ti = c & 1; wt[k] = ti
            issue_w(k, seq_loc[k][1], ti)
    prof(a, 4, P['prof'])
    for j in range(4): a(f'v_permlane32_swap_b32 v{ACC+j}, v{ACC+4+j}')
    for j in range(4): a(f'v_add_f32 v{ACC+j}, v{ACC+j}, v{ACC+4+j}')
    a(f'v_cvt_pk_bf16_f32 v{ACC+4}, v{ACC}, v{ACC+1}'); a(f'v_cvt_pk_bf16_f32 v{ACC+5}, v{ACC+2}, v{ACC+3}')
    a(f'ds_write_b64 v12, v[{ACC+4}:{ACC+5}]')
    for j in range(4): a(f'v_mov_b32 v{ACC+12+j}, v{ACC+8+j}')
    for j in range(4): a(f'v_permlane32_swap_b32 v{ACC+8+j}, v{ACC+12+j}')
    for j in range(4): a(f'v_add_f32 v{ACC+8+j}, v{ACC+8+j}, v{ACC+12+j}')
    a(f'v_cvt_pk_bf16_f32 v{ACC+12}, v{ACC+8}, v{ACC+9}'); a(f'v_cvt_pk_bf16_f32 v{ACC+13}, v{ACC+10}, v{ACC+11}')
    a(f's_mov_b64 exec, {LOW32}')
    a(f'ds_write_b64 v12, v[{ACC+12}:{ACC+13}] offset:512')
    a('s_mov_b64 exec, -1')
    a('s_waitcnt lgkmcnt(0)')
    for i in range(40): a(f'v_mov_b32 v{ACC+i}, 0')
    a('s_barrier')
    prof(a, 1, P['prof'])
    L = Lgkm(a)
    for c in range(3):
        L.issue(f'ds_read_b64_tr_b16 v[{AF+4*c}:{AF+4*c+1}], v13 offset:{c*1024}', ('A0', c))
        L.issue(f'ds_read_b64_tr_b16 v[{AF+4*c+2}:{AF+4*c+3}], v13 offset:{c*1024+128}', ('A', c))
    locO = {(c, t): loc[('o', c, t)] for c in range(3) for t in range(10)}
    gemv(a, L, 3, 10, locO, lambda c, t: (c, t), lambda c: AF + 4*c, ACC, 5, 11, WT, None, lambda c: [('A', c)])
    prof(a, 5, P['prof'])
    for pr in range(5):
        x = ACC + 8*pr; y = x + 4
        for j in range(4): a(f'v_permlane32_swap_b32 v{x+j}, v{y+j}')
        for j in range(4): a(f'v_add_f32 v{x+j}, v{x+j}, v{y+j}')
        o = 56 + 4 * (pr % 2)
        a(f'v_cvt_pk_bf16_f32 v{o}, v{x}, v{x+1}')
        a(f'v_cvt_pk_bf16_f32 v{o+2}, v{x+2}, v{x+3}')
        a(f'v_mov_b32 v{o+1}, 0'); a(f'v_mov_b32 v{o+3}, 0')
        a(f'v_permlane16_swap_b32 v{o}, v{o+1}')
        a(f'v_permlane16_swap_b32 v{o+2}, v{o+3}')
        for j in range(4): a(f'v_min_u32 v{o+j}, -2, v{o+j}')
        a(f's_add_u32 {sT1}, {sU[0]}, {pr*2*16384}')
        a('s_mov_b64 exec, s[70:71]')
        if not P.get('noU'): a(f'buffer_store_dwordx4 v[{o}:{o+3}], v14, {SRD_WS}, {sT1} offen sc1')
        a('s_mov_b64 exec, -1')
    prof(a, 2, P['prof'])
    a(f's_cmp_eq_u32 {sW}, 0'); a('s_cbranch_scc0 vo_nofl')
    prof_flush(a, P['prof'])
    a.label('vo_nofl')
    rotate(a, sMEM); rotate(a, sU)
    a(f's_add_u32 {sSTEP}, {sSTEP}, 1')
    a(f's_cmp_lt_u32 {sSTEP}, {P["steps"]}')
    a('s_cbranch_scc1 vo_step')
    a('s_branch done')

def gen_r(a, P):
    vl = 10
    RA = 0; RB_ = 4096
    get_parity(a, 'r')
    a(f'v_lshlrev_b32 v1, 4, v{vl}')
    a(f'v_and_b32 v16, 15, v{vl}'); a(f'v_lshrrev_b32 v17, 4, v{vl}')
    a(f'v_and_b32 v18, 7, v{vl}'); a(f'v_bfe_u32 v19, v{vl}, 3, 1')
    a(f'v_cmp_eq_u32 vcc, 0, v19'); a('v_mov_b32 v5, 0xeeeeeeee'); a('v_mov_b32 v8, 0x44444444'); a('v_cndmask_b32 v5, v5, v8, vcc')
    a(f's_lshl_b32 {sT0}, {sW}, 14')
    a(f'v_lshrrev_b32 v20, 1, v17'); a(f'v_lshlrev_b32 v20, 10, v20')
    a(f'v_and_b32 v21, 1, v17'); a(f'v_lshl_add_u32 v21, v21, 1, v19'); a(f'v_lshl_add_u32 v20, v21, 7, v20')
    a(f'v_lshl_add_u32 v20, v18, 4, v20'); a(f'v_add_u32 v2, {sT0}, v20'); a(f'v_add_u32 v3, 4096, v2')
    a(f'v_lshlrev_b32 v20, 11, v17'); a(f'v_lshl_add_u32 v20, v19, 6, v20'); a(f'v_lshl_add_u32 v20, v18, 3, v20')
    a(f'v_add_u32 v20, 512, v20'); a(f'v_add_u32 v4, {sT0}, v20')
    a(f's_lshl_b32 {sT0}, {sIDX}, 14'); a(f's_lshl_b32 {sT1}, {sW}, 11'); a(f's_add_u32 {sT0}, {sT0}, {sT1}')
    a(f'v_lshlrev_b32 v20, 8, v17'); a(f'v_lshl_add_u32 v20, v16, 4, v20'); a(f'v_add_u32 v6, {sT0}, v20')
    a(f's_lshl_b32 {sT0}, {sW}, 13'); a(f'v_add_u32 v7, {sT0}, v1'); a(f'v_add_u32 v11, 4096, v7')
    a(f'v_and_b32 v20, 1, v17'); a(f'v_lshlrev_b32 v20, 2, v20'); a(f'v_lshrrev_b32 v21, 5, v{vl}'); a(f'v_add_u32 v20, v20, v21')
    a(f'v_lshlrev_b32 v20, 6, v20'); a(f'v_lshl_add_u32 v20, v16, 2, v20'); a(f's_lshl_b32 {sT0}, {sW}, 9'); a(f'v_add_u32 v12, {sT0}, v20')
    a(f'v_and_b32 v20, 3, v{vl}'); a(f'v_bfe_u32 v21, v{vl}, 2, 3'); a(f'v_lshrrev_b32 v22, 5, v{vl}')
    a(f'v_lshlrev_b32 v23, 6, v21'); a(f'v_lshl_add_u32 v23, v20, 4, v23'); a(f'v_lshl_add_u32 v13, v22, 3, v23')
    a(f's_lshr_b32 {sT0}, {sIDX}, 2'); a(f's_lshr_b32 {sT1}, {sT0}, 3'); a(f's_lshl_b32 {sT1}, {sT1}, 14'); a(f's_and_b32 {sT0}, {sT0}, 7')
    a(f's_lshl_b32 {sT0}, {sT0}, 10'); a(f's_add_u32 {sT0}, {sT0}, {sT1}'); a(f's_and_b32 {sT1}, {sIDX}, 3'); a(f's_lshl_b32 {sT1}, {sT1}, 8'); a(f's_add_u32 {sT0}, {sT0}, {sT1}')
    a(f'v_lshlrev_b32 v23, 4, v21'); a(f'v_lshl_add_u32 v23, v22, 7, v23'); a(f'v_add_u32 v14, {sT0}, v23')
    a('s_mov_b32 s70, 0x11111111'); a('s_mov_b32 s71, 0x11111111')
    a(f'v_mul_u32_u24 v20, 2560, v17'); a(f'v_lshl_add_u32 v20, v16, 4, v20'); a(f'v_add_u32 v24, 2048, v20')
    a(f'v_lshlrev_b32 v20, 8, v17'); a(f'v_lshl_add_u32 v20, v16, 2, v20'); a(f's_lshl_b32 {sT0}, {sW}, 11'); a(f's_add_u32 {sT0}, {sT0}, {RB_}')
    a(f'v_add_u32 v25, {sT0}, v20')
    a(f'v_lshrrev_b32 v20, 3, v0'); a(f'v_and_b32 v21, 7, v0')
    a(f'v_lshrrev_b32 v22, 4, v20'); a(f'v_lshlrev_b32 v22, 10, v22'); a(f'v_and_b32 v23, 15, v20'); a(f'v_lshl_add_u32 v22, v23, 6, v22')
    a(f'v_lshl_add_u32 v22, v21, 3, v22'); a(f'v_add_u32 v26, {RB_}, v22')
    a(f'v_mul_u32_u24 v22, 1280, v20'); a(f'v_lshl_add_u32 v22, v21, 2, v22'); a(f's_lshl_b32 {sT0}, {sIDX}, 5'); a(f'v_add_u32 v27, {sT0}, v22')
    a(f's_mul_i32 s81, {sIDX}, 32768'); a(f's_add_u32 s81, s81, {VO_BASE}')
    a('s_mov_b32 s82, 0')
    WS = [128, 160]
    def vo_prefetch(set_):
        b = WS[set_]
        for hh in range(8):
            va = 7 if hh < 4 else 11
            a(f'buffer_load_dwordx4 v[{b+4*hh}:{b+4*hh+3}], v{va}, {SRD_WS}, s81 offen offset:{(hh%4)*1024} sc1')
    if P.get('mega'):
        a('s_mov_b32 s84, 0'); wait_flag(a, 'rvo0', 's84', FL_VO, 32, 9)
    vo_prefetch(0)
    a(f's_mov_b32 {sSTEP}, 0')
    PX = 32; PM = 48; UO = 56; ACC = 28
    PT = 64
    a.label('r_step')
    for half in range(2):
        nm = f'r{half}'
        W = WS[half]
        for j in range(4): a(f'v_mov_b32 v{ACC+j}, 0')
        loads = []
        for q in range(4):
            loads.append((PX+4*q, 4, f'buffer_load_dwordx4 v[{PX+4*q}:{PX+4*q+3}], v{2 if q < 2 else 3}, {SRD_WS}, {sP[0]} offen offset:{(q%2)*2048} sc1'))
        loads.append((PM, 2, f'buffer_load_dwordx2 v[{PM}:{PM+1}], v4, {SRD_WS}, {sP[0]} offen sc1'))
        loads.append((PM+2, 2, f'buffer_load_dwordx2 v[{PM+2}:{PM+3}], v4, {SRD_WS}, {sP[0]} offen offset:1024 sc1'))
        loads.append((UO, 4, f'buffer_load_dwordx4 v[{UO}:{UO+3}], v6, {SRD_WS}, {sU[0]} offen sc1'))
        loads.append((UO+4, 4, f'buffer_load_dwordx4 v[{UO+4}:{UO+7}], v6, {SRD_WS}, {sU[0]} offen offset:1024 sc1'))
        if P.get('noU'): loads = loads[:6]
        poll_masked(a, f'{nm}_poll', loads, 9, 'timeout', sleep=P.get('sleepR', 0))
        prof(a, 0, P['prof'])
        for q in range(4):
            a(f'v_smfmac_f32_16x16x64_bf16 v[{ACC}:{ACC+3}], v[{PX+4*q}:{PX+4*q+3}], v[{W+8*q}:{W+8*q+7}], v5')
        a(f'v_smfmac_f32_16x16x64_bf16 v[{ACC}:{ACC+3}], v[{PM}:{PM+3}], v[{UO}:{UO+7}], v5')
        a(f'v_permlane32_swap_b32 v{ACC}, v{ACC+1}'); a(f'v_permlane32_swap_b32 v{ACC+2}, v{ACC+3}')
        a(f'v_add_f32 v{ACC}, v{ACC}, v{ACC+1}'); a(f'v_add_f32 v{ACC+2}, v{ACC+2}, v{ACC+3}')
        a(f'ds_write2_b32 v12, v{ACC}, v{ACC+2} offset0:0 offset1:32')
        a('s_waitcnt lgkmcnt(0)')
        a('s_barrier')
        prof(a, 1, P['prof'])
        a(f's_cmp_eq_u32 {sW}, 0'); a(f's_cbranch_scc0 {nm}_nopub')
        for w_ in range(4): a(f'ds_read_b64 v[{40+2*w_}:{41+2*w_}], v13 offset:{RA + w_*512}')
        a('s_waitcnt lgkmcnt(0)')
        a('v_add_f32 v40, v40, v42'); a('v_add_f32 v41, v41, v43'); a('v_add_f32 v44, v44, v46'); a('v_add_f32 v45, v45, v47')
        a('v_add_f32 v40, v40, v44'); a('v_add_f32 v41, v41, v45')
        a('v_cvt_pk_bf16_f32 v40, v40, v41')
        a('v_min_u32 v40, -2, v40')
        a('v_mov_b32_dpp v41, v40 quad_perm:[1,1,1,1] row_mask:0xf bank_mask:0xf')
        a('v_mov_b32_dpp v42, v40 quad_perm:[2,2,2,2] row_mask:0xf bank_mask:0xf')
        a('v_mov_b32_dpp v43, v40 quad_perm:[3,3,3,3] row_mask:0xf bank_mask:0xf')
        a('s_mov_b64 exec, s[70:71]')
        a(f'buffer_store_dwordx4 v[40:43], v14, {SRD_WS}, {sMEM[1]} offen{store_flag(P["plainM"])}')
        prof(a, 2, P['prof'])
        a('s_mov_b64 exec, -1')
        prof_flush(a, P['prof'], 208)
        a('s_mov_b64 exec, s[70:71]')
        a('v_mov_b32 v44, -1'); a('v_mov_b32 v45, -1'); a('v_mov_b32 v46, -1'); a('v_mov_b32 v47, -1')
        a(f'buffer_store_dwordx4 v[44:47], v14, {SRD_WS}, {sMEM[0]} offen{store_flag(P["plainM"])}')
        a('s_mov_b64 exec, -1')
        a.label(f'{nm}_nopub')
        a('s_barrier')
        if P.get('noTok'): a(f's_branch {nm}_skiptok')
        if P.get('mega'):
            a(f's_cmp_lt_u32 {sSTEP}, {DIRECT}'); a(f's_cbranch_scc1 {nm}_nog')
            a(f's_and_b32 s84, {sSTEP}, 3'); a('s_cmp_eq_u32 s84, 0'); a(f's_cbranch_scc0 {nm}_nog')
            a(f's_lshr_b32 s84, {sSTEP}, 2'); wait_flag(a, f'{nm}g', 's84', FL_G, 4, 9)
            a.label(f'{nm}_nog')
            a(f's_add_u32 s84, {sSTEP}, 1'); a('s_and_b32 s85, s84, 7'); a('s_cmp_eq_u32 s85, 0'); a(f's_cbranch_scc0 {nm}_novw')
            a(f's_cmp_ge_u32 {sSTEP}, 63'); a(f's_cbranch_scc1 {nm}_novw')
            a('s_lshr_b32 s84, s84, 3'); wait_flag(a, f'{nm}v', 's84', FL_VO, 32, 9)
            a.label(f'{nm}_novw')
        a(f'buffer_load_dword v52, v27, {SRD_X}, s82 offen')
        a(f's_add_u32 {sT1}, s82, {G_BASE}')
        a(f'buffer_load_dword v53, v27, {SRD_WS}, {sT1} offen sc1')
        a(f's_cmp_ge_u32 {sSTEP}, 63'); a(f's_cbranch_scc1 {nm}_nopf')
        a(f's_add_u32 s81, s81, {40*32768}')
        vo_prefetch(half ^ 1)
        a.label(f'{nm}_nopf')
        a(f's_mov_b32 {sT2}, 0')
        a.label(f'{nm}_pt')
        a(f's_mul_i32 {sT0}, {sW}, 20480'); a(f's_add_u32 {sT0}, {sT0}, {sPT[0]}')
        a(f's_mov_b32 {sT1}, {sT0}')
        for hh in range(8):
            if hh: a(f's_add_u32 {sT1}, {sT1}, 2560')
            for tt in range(2):
                r = PT + 8*hh + 4*tt
                a(f'buffer_load_dwordx4 v[{r}:{r+3}], v1, {SRD_WS}, {sT1} offen offset:{tt*1024} sc1')
        for u in range(2):
            if u: a(f's_add_u32 {sT0}, {sT0}, 10240')
            for tt in range(2):
                r = 192 + 8*u + 4*tt
                a(f'buffer_load_dwordx4 v[{r}:{r+3}], v24, {SRD_WS}, {sT0} offen offset:{tt*256} sc1')
        a('s_waitcnt vmcnt(0)')
        regs = list(range(PT, PT+64)) + list(range(192, 208))
        a(f'v_max3_u32 v9, v{regs[0]}, v{regs[1]}, v{regs[2]}')
        i = 3
        while i < len(regs):
            if i + 1 < len(regs): a(f'v_max3_u32 v9, v9, v{regs[i]}, v{regs[i+1]}'); i += 2
            else: a(f'v_max_u32 v9, v9, v{regs[i]}'); i += 1
        a('v_cmp_eq_u32 vcc, -1, v9')
        a(f's_cbranch_vccz {nm}_ptok')
        a(f's_add_u32 {sT2}, {sT2}, 1'); a(f's_cmp_lt_u32 {sT2}, 0x100000'); a(f's_cbranch_scc1 {nm}_pt')
        a('s_branch timeout')
        a.label(f'{nm}_ptok')
        TA = 40
        for hh in range(8):
            for tt in range(2):
                r = PT + 8*hh + 4*tt; acc = TA + 4*tt
                c0 = '0' if hh == 0 else f'v[{acc}:{acc+3}]'
                a(f'v_mfma_f32_16x16x32_bf16 v[{acc}:{acc+3}], v[{r}:{r+3}], v[{W+4*hh}:{W+4*hh+3}], {c0}')
        for u in range(2):
            for tt in range(2):
                r = 192 + 8*u + 4*tt; acc = TA + 4*tt
                a(f'v_mfma_f32_16x16x32_bf16 v[{acc}:{acc+3}], v[{r}:{r+3}], v[{UO+4*u}:{UO+4*u+3}], v[{acc}:{acc+3}]')
        for tt in range(2):
            acc = TA + 4*tt
            a(f'ds_write2_b32 v25, v{acc}, v{acc+1} offset0:{tt*256//1 if False else 0} offset1:16') if False else None
        for tt in range(2):
            acc = TA + 4*tt
            if tt == 1: a('v_add_u32 v9, 1024, v25')
            ad = 25 if tt == 0 else 9
            a(f'ds_write2_b32 v{ad}, v{acc}, v{acc+1} offset0:0 offset1:16')
            a(f'ds_write2_b32 v{ad}, v{acc+2}, v{acc+3} offset0:32 offset1:48')
        a('s_waitcnt lgkmcnt(0)')
        a('s_barrier')
        for w_ in range(4): a(f'ds_read_b64 v[{40+2*w_}:{41+2*w_}], v26 offset:{w_*2048}')
        a('s_waitcnt lgkmcnt(0)')
        a('v_add_f32 v40, v40, v42'); a('v_add_f32 v41, v41, v43'); a('v_add_f32 v44, v44, v46'); a('v_add_f32 v45, v45, v47')
        a('v_add_f32 v40, v40, v44'); a('v_add_f32 v41, v41, v45')
        a('v_cvt_pk_bf16_f32 v40, v40, v41')
        if P.get('mega'):
            a(f's_cmp_lt_u32 {sSTEP}, {DIRECT}'); a(f's_cbranch_scc0 {nm}_direct')
            a(f's_add_u32 {sT1}, s82, {S_BASE}')
            a(f'buffer_store_dword v40, v27, {SRD_WS}, {sT1} offen sc1')
            a('s_waitcnt vmcnt(0)'); a('s_barrier')
            a(f's_cmp_eq_u32 {sW}, 0'); a(f's_cbranch_scc0 {nm}_skiptok')
            a(f's_lshl_b32 {sT1}, {sSTEP}, 7'); a(f's_add_u32 {sT1}, {sT1}, {flag(FL_S)}')
            a('v_mov_b32 v41, 1'); a('s_mov_b64 exec, 1')
            a(f'buffer_atomic_add v41, off, {SRD_WS}, {sT1} sc1')
            a('s_mov_b64 exec, -1')
            a(f's_branch {nm}_skiptok')
            a.label(f'{nm}_direct')
        a('v_lshlrev_b32 v41, 16, v40'); a('v_and_b32 v42, 0xffff0000, v40')
        a('v_lshlrev_b32 v43, 16, v53'); a('v_and_b32 v44, 0xffff0000, v53')
        a('v_mul_f32 v41, v41, v43'); a('v_mul_f32 v42, v42, v44')
        a('v_cvt_pk_bf16_f32 v40, v41, v42')
        a('v_lshlrev_b32 v41, 16, v40'); a('v_and_b32 v42, 0xffff0000, v40')
        a('v_lshlrev_b32 v43, 16, v52'); a('v_and_b32 v44, 0xffff0000, v52')
        a('v_add_f32 v41, v41, v43'); a('v_add_f32 v42, v42, v44')
        a('v_cvt_pk_bf16_f32 v40, v41, v42')
        a(f'buffer_store_dword v40, v27, {SRD_O}, s82 offen')
        a.label(f'{nm}_skiptok')
        a(f's_add_u32 s82, s82, 40960')
        rotate(a, sMEM); rotate(a, sP); rotate(a, sU); rotate(a, sPT)
        a(f's_add_u32 {sSTEP}, {sSTEP}, 1')
        if half == 0:
            a(f's_cmp_ge_u32 {sSTEP}, {P["steps"]}'); a('s_cbranch_scc1 done')
    a(f's_cmp_lt_u32 {sSTEP}, {P["steps"]}')
    a('s_cbranch_scc1 r_step')
    a('s_branch done')

def common_prologue(a, P):
    a('s_cmp_ge_u32 s2, 256'); a('s_cbranch_scc1 done')
    a('s_load_dwordx2 s[84:85], s[0:1], 104')
    a('s_load_dwordx2 s[86:87], s[0:1], 96')
    a('s_load_dwordx2 s[88:89], s[0:1], 0')
    a('s_load_dwordx2 s[90:91], s[0:1], 88')
    a('s_load_dwordx4 s[92:95], s[0:1], 16')
    a('s_load_dwordx4 s[96:99], s[0:1], 32')
    a('s_getreg_b32 s3, hwreg(HW_REG_XCC_ID, 0, 4)')
    a('v_lshrrev_b32 v1, 6, v0'); a('v_and_b32 v10, 63, v0')
    a(f'v_readfirstlane_b32 {sW}, v1')
    a('s_waitcnt lgkmcnt(0)')
    mk_srd(a, 4, 84, WS_SIZE); mk_srd(a, 16, 88, S*DM*2); mk_srd(a, 20, 90, S*DM*2)
    a('s_mov_b32 s50, -1'); a('s_mov_b32 s51, 0')
    a('s_and_b32 s3, s3, 7')
    a(f's_cmp_eq_u32 {sW}, 0'); a('s_cbranch_scc0 pro_wait')
    a('s_lshl_b32 s40, s3, 2')
    a('v_mov_b32 v2, s40'); a('v_mov_b32 v3, 1'); a('v_mov_b32 v5, 32')
    a('s_mov_b64 exec, 1')
    a('global_atomic_add v4, v2, v3, s[86:87] sc0')
    a('s_waitcnt vmcnt(0)')
    a('global_atomic_add v5, v3, s[86:87]')
    a('v_readfirstlane_b32 s41, v4')
    a('s_lshl_b32 s42, s3, 5'); a('s_add_u32 s42, s42, s41')
    a('s_cmp_lt_u32 s41, 32'); a('s_cbranch_scc1 pro_have')
    a('v_mov_b32 v5, 36')
    a('global_atomic_add v6, v5, v3, s[86:87] sc0')
    a('s_waitcnt vmcnt(0)')
    a('v_readfirstlane_b32 s43, v6')
    a('s_mov_b32 s44, 0')
    a.label('pro_ovw')
    a('v_mov_b32 v5, 32')
    a('global_load_dword v6, v5, s[86:87] sc1'); a('s_waitcnt vmcnt(0)')
    a('v_readfirstlane_b32 s45, v6')
    a('s_cmp_ge_u32 s45, 256'); a('s_cbranch_scc1 pro_ovs')
    a('s_add_u32 s44, s44, 1'); a('s_cmp_lt_u32 s44, 0x400000'); a('s_cbranch_scc1 pro_ovw')
    a('s_mov_b64 exec, -1'); a('s_branch timeout')
    a.label('pro_ovs')
    a('s_mov_b32 s44, 0')
    a.label('pro_ovl')
    a('s_lshl_b32 s45, s44, 2'); a('v_mov_b32 v5, s45')
    a('global_load_dword v6, v5, s[86:87] sc1'); a('s_waitcnt vmcnt(0)')
    a('v_readfirstlane_b32 s45, v6')
    a('s_min_u32 s45, s45, 32'); a('s_sub_u32 s46, 32, s45')
    a('s_cmp_lt_u32 s43, s46'); a('s_cbranch_scc1 pro_ovf')
    a('s_sub_u32 s43, s43, s46'); a('s_add_u32 s44, s44, 1')
    a('s_cmp_lt_u32 s44, 8'); a('s_cbranch_scc1 pro_ovl')
    a('s_mov_b64 exec, -1'); a('s_branch timeout')
    a.label('pro_ovf')
    a('s_lshl_b32 s42, s44, 5'); a('s_add_u32 s42, s42, s45'); a('s_add_u32 s42, s42, s43')
    a.label('pro_have')
    a('v_mov_b32 v4, s42'); a('v_mov_b32 v2, 0')
    a('ds_write_b32 v2, v4')
    a('s_waitcnt lgkmcnt(0)')
    a('s_mov_b64 exec, -1')
    a.label('pro_wait')
    a('s_barrier')
    a('v_mov_b32 v2, 0'); a('ds_read_b32 v4, v2'); a('s_waitcnt lgkmcnt(0)')
    a('v_readfirstlane_b32 s42, v4')
    a('s_barrier')

CAL_OFF = 16384 + 4096
def calibrate(a):
    a(f's_cmp_eq_u32 {sW}, 0'); a('s_cbranch_scc0 cal_done')
    a('s_mov_b64 exec, 1')
    a('v_mov_b32 v2, 0')
    a('s_mov_b32 s44, 0')
    for ch in range(2):
        for par in range(2):
            off = ch * 2 * MB + CAL_OFF + par * 8192
            a(f's_mov_b32 s45, {off}'); a(f's_mov_b32 s{56+par}, -1')
            for rep in range(3):
                a('s_memtime s[46:47]'); a('s_waitcnt lgkmcnt(0)')
                a(f'buffer_store_dword v2, off, {SRD_WS}, s45 offset:{rep*128} sc1')
                a('s_waitcnt vmcnt(0)')
                a('s_memtime s[52:53]'); a('s_waitcnt lgkmcnt(0)')
                a('s_sub_u32 s46, s52, s46'); a(f's_min_u32 s{56+par}, s{56+par}, s46')
        a('s_cmp_lt_u32 s57, s56'); a(f's_cselect_b32 s45, {1 << ch}, 0'); a('s_or_b32 s44, s44, s45')
    a('s_add_u32 s44, s44, 0x100')
    a('v_mov_b32 v3, s44'); a('v_mov_b32 v2, 40')
    a('global_store_dword v2, v3, s[86:87] sc1')
    a('s_waitcnt vmcnt(0)')
    a('s_mov_b64 exec, -1')
    a.label('cal_done')

def get_parity(a, tag):
    a('s_mov_b32 s44, 0')
    a.label(f'{tag}_gp')
    a('v_mov_b32 v16, 40')
    a('global_load_dword v17, v16, s[86:87] sc1'); a('s_waitcnt vmcnt(0)')
    a('v_readfirstlane_b32 s45, v17')
    a('s_cmp_lg_u32 s45, 0'); a(f's_cbranch_scc1 {tag}_gpd')
    a('s_add_u32 s44, s44, 1'); a('s_cmp_lt_u32 s44, 0x100000'); a(f's_cbranch_scc1 {tag}_gp')
    a('s_branch timeout')
    a.label(f'{tag}_gpd')
    a(f's_and_b32 {sPAR}, s45, 1'); a(f's_lshl_b32 {sPAR}, {sPAR}, 13')
    a('s_and_b32 s83, s45, 2'); a('s_lshl_b32 s83, s83, 12')
    ring_init(a)

def gen_chain_kernel(P):
    a = Asm()
    common_prologue(a, P)
    a('s_cmp_eq_u32 s42, 84'); a('s_cbranch_scc0 nocal')
    calibrate(a)
    a('s_branch done')
    a.label('nocal')
    a('s_cmp_ge_u32 s42, 128'); a('s_cbranch_scc1 done')
    a('s_cmp_lt_u32 s42, 64'); a('s_cbranch_scc1 placed')
    a('s_and_b32 s41, s42, 31'); a('s_cmp_ge_u32 s41, 20'); a('s_cbranch_scc1 done')
    a('s_lshr_b32 s43, s42, 5'); a('s_lshl_b32 s42, s41, 1'); a('s_add_u32 s42, s42, s43'); a('s_add_u32 s42, s42, 62')
    a.label('placed')
    a('s_lshl_b32 s48, s42, 11'); a(f's_add_u32 s48, s48, {FLAG_BASE + 65536}')
    a('s_cmp_lt_u32 s42, 32'); a('s_cbranch_scc1 role_qk')
    a('s_cmp_lt_u32 s42, 64'); a('s_cbranch_scc1 role_vo')
    a('s_branch role_r')
    a.label('role_qk')
    a(f's_mov_b32 {sIDX}, s42'); mk_srd(a, 8, 92, DM*H*DH*2); mk_srd(a, 12, 94, DM*H*DH*2)
    gen_qk(a, P)
    a.label('role_vo')
    a(f's_sub_u32 {sIDX}, s42, 32'); mk_srd(a, 8, 96, DM*H*DH*2); mk_srd(a, 12, 98, DM*H*DH*2)
    gen_vo(a, P)
    a.label('role_r')
    a(f's_sub_u32 {sIDX}, s42, 64')
    gen_r(a, P)
    a.label('timeout')
    a('v_mov_b32 v2, 252'); a('v_mov_b32 v3, 0xdead'); a('s_mov_b64 exec, 1')
    a('global_store_dword v2, v3, s[86:87]')
    a.label('done')
    a('s_endpgm')
    return a

if __name__ == '__main__':
    import sys
    fn = sys.argv[1]
    P = dict(prof=0, par=-1, plainP=0, plainM=0, steps=64)
    for kv in sys.argv[2:]:
        k, v = kv.split('='); P[k] = int(v)
    a = gen_chain_kernel(P)
    s = '; @launch kernel=chain_kernel grid=(256,1,1) block=(256,1,1) lds=163840\n.amdgcn_target "amdgcn-amd-amdhsa--gfx950"\n.text\n'
    s += head('chain_kernel') + a.text() + '.section .rodata,"a"\n' + desc('chain_kernel')
    open(fn, 'w').write(s)
    print(fn, 'instructions:', a.count())
```

```python
from asmlib import *
from layout import *
import gen_chain as g1
from gen_chain import (Lgkm, SRD_WS, SRD_A, SRD_B, SRD_X, SRD_O, sW, sIDX, sSTEP, sPAR, sMEM, sP, sU, sPT, sT0, sT1, sT2, sT3,
                       mk_srd, rotate, poll_masked, prof, prof_flush, load_weights, dma_voffs, tr_base, finish_lds_tiles,
                       WL_BASE, LOW32, get_parity, f32hex, SC, store_flag)

def place(order, lds_list):
    loc = {}; na = nv = 0
    for n, key in enumerate(lds_list): loc[key] = ('l', n)
    for key in order:
        if key in loc: continue
        if na < 32: loc[key] = ('a', 8 * na); na += 1
        else: loc[key] = ('v', 96 + 8 * nv); nv += 1
    assert na == 32 and nv == 20 and len(lds_list) == 8
    return loc

MEMB2 = 16384
def memb(c): return c * 1024 if c < 8 else MEMB2 + (c - 8) * 1024

def mem_setup(a):
    a('v_lshlrev_b32 v1, 4, v10')
    a(f's_lshl_b32 {sT0}, {sW}, 10'); a(f'v_add_u32 v2, {sT0}, v1')
    a(f's_lshl_b32 {sT1}, {sW}, 9'); a(f's_add_u32 {sT1}, {sT1}, 16384'); a(f'v_add_u32 v4, {sT1}, v1')
    a('v_and_b32 v5, 8, v10'); a('v_cmp_eq_u32 vcc, 0, v5')
    a('v_mov_b32 v5, 0xeeeeeeee'); a('v_mov_b32 v9, 0x44444444'); a('v_cndmask_b32 v5, v5, v9, vcc')

def mem_poll(a, name, pd, P):
    a(f's_add_u32 s84, {sMEM[0]}, 4096')
    loads = [(pd, 4, f'buffer_load_dwordx4 v[{pd}:{pd+3}], v2, {SRD_WS}, {sMEM[0]} offen sc1'),
             (pd+4, 4, f'buffer_load_dwordx4 v[{pd+4}:{pd+7}], v2, {SRD_WS}, s84 offen sc1'),
             (pd+8, 4, f'buffer_load_dwordx4 v[{pd+8}:{pd+11}], v4, {SRD_WS}, {sMEM[0]} offen sc1')]
    poll_masked(a, name, loads, 9, 'timeout', first_exec=[None, None, LOW32], sleep=P.get('sleepM', 0))
    prof(a, 0, P['prof'])
    a(f'ds_write_b128 v2, v[{pd}:{pd+3}]')
    a(f'ds_write_b128 v2, v[{pd+4}:{pd+7}] offset:4096')
    a(f's_mov_b64 exec, {LOW32}')
    a(f'ds_write_b128 v4, v[{pd+8}:{pd+11}]')
    a('s_mov_b64 exec, -1')
    a('s_waitcnt lgkmcnt(0)')
    a('s_barrier')
    prof(a, 3, P['prof'])

def tail_ops(acc, dst, write):
    return [f'v_permlane32_swap_b32 v{acc}, v{acc+2}', f'v_permlane32_swap_b32 v{acc+1}, v{acc+3}',
            f'v_add_f32 v{acc}, v{acc}, v{acc+2}', f'v_add_f32 v{acc+1}, v{acc+1}, v{acc+3}',
            f'v_cvt_pk_bf16_f32 v{dst}, v{acc}, v{acc+1}'] + ([write] if write else [])

class Stream:
    def __init__(self, a, L): self.a = a; self.L = L; self.f = []
    def add(self, ops): self.f += ops
    def emit_one(self):
        o = self.f.pop(0)
        if isinstance(o, tuple):
            if o[0] == 'lds': self.L.issue(o[1], o[2])
            elif o[0] == 'fn': o[1]()
        else: self.a(o)
    def slot(self, n=1):
        for _ in range(n):
            if self.f: self.emit_one()
    def flush(self):
        while self.f: self.emit_one()

def gen_qk(a, P):
    XB = 8192; KXB = 18432; QXB = 30720
    passes = [(0, 1), (2, 3), (4, 5)]
    order = [(c, t) for ps in passes for c in range(10) for t in ps]
    lds_list = [(c, 1) for c in range(2, 10)]
    loc = place(order, lds_list)
    a(f's_mul_i32 s49, {sW}, {36*1024}')
    dma_voffs(a, 3, 6, 16, 12288, 10, 24)
    tr_base(a, 22, 96, 10, 24)
    TMP = 32
    units = []
    for c in range(10):
        for m in range(2):
            dests = []
            for tl in range(3):
                cls, b = loc[(c, 3*m + tl)]
                dests.append(('v', TMP + 8*b) if cls == 'l' else (cls, b))
            soff = [f's_mul_i32 {sT3}, {sIDX}, 384', f's_mul_i32 {sT2}, {sW}, 96', f's_add_u32 {sT3}, {sT3}, {sT2}', f's_add_u32 {sT3}, {sT3}, {64*c*12288}']
            units.append(dict(srd=SRD_A if m == 0 else SRD_B, soff=soff, T=3, voffs=list(range(16, 22)), dests=dests, RB=96))
    load_weights(a, units, {96: 22})
    a(f's_lshl_b32 {sT0}, {sW}, 14'); a(f's_add_u32 {sT0}, {sT0}, {WL_BASE}')
    a('v_lshlrev_b32 v11, 4, v10'); a(f'v_add_u32 v11, {sT0}, v11')
    finish_lds_tiles(a, loc, TMP, 11)
    get_parity(a, 'qk')
    mem_setup(a)
    a('v_and_b32 v16, 15, v10'); a('v_lshrrev_b32 v17, 4, v10')
    a('v_lshrrev_b32 v18, 2, v16'); a('v_and_b32 v19, 1, v17'); a('v_xor_b32 v18, v18, v19'); a('v_lshlrev_b32 v18, 3, v18')
    a('v_lshl_add_u32 v18, v16, 5, v18'); a('v_lshrrev_b32 v19, 5, v10'); a('v_lshl_add_u32 v18, v19, 2, v18')
    a(f's_mul_i32 {sT0}, {sW}, 1536'); a(f's_add_u32 {sT0}, {sT0}, {XB}')
    a(f'v_add_u32 v3, {sT0}, v18'); a('v_xor_b32 v12, 16, v3')
    a('v_bfe_u32 v18, v10, 2, 2'); a('v_lshl_add_u32 v18, v17, 2, v18'); a('v_lshlrev_b32 v18, 5, v18')
    a('v_and_b32 v19, 3, v10'); a('v_xor_b32 v19, v19, v17'); a('v_lshlrev_b32 v19, 3, v19'); a('v_add_u32 v13, v18, v19'); a(f'v_add_u32 v13, {XB}, v13')
    a('v_lshrrev_b32 v18, 2, v16'); a('v_and_b32 v19, 3, v16')
    a('v_lshrrev_b32 v20, 1, v18'); a('v_lshlrev_b32 v20, 4, v20')
    a('v_lshrrev_b32 v21, 1, v19'); a('v_lshl_add_u32 v20, v21, 2, v20')
    a('v_and_b32 v21, 1, v18'); a('v_lshl_add_u32 v20, v21, 1, v20')
    a('v_and_b32 v21, 1, v19'); a('v_add_u32 v20, v20, v21')
    a('v_lshl_add_u32 v21, v18, 3, v19')
    a(f's_cmp_eq_u32 {sW}, 0'); a('s_cselect_b64 vcc, -1, 0'); a('v_cndmask_b32 v20, v21, v20, vcc')
    a('v_and_b32 v21, 16, v20'); a('v_lshrrev_b32 v22, 2, v21'); a('v_lshrrev_b32 v21, 1, v21')
    a('v_xor_b32 v20, v20, v21'); a('v_xor_b32 v20, v20, v22'); a('v_lshlrev_b32 v20, 4, v20')
    a('v_lshl_add_u32 v6, v17, 9, v20'); a(f'v_add_u32 v6, {KXB}, v6')
    a(f's_cmp_eq_u32 {sW}, 0'); a('s_cselect_b32 s52, 128, 64'); a('v_xor_b32 v7, s52, v6')
    a(f's_sub_u32 {sT0}, {sW}, 1'); a(f's_lshl_b32 {sT0}, {sT0}, 4'); a(f'v_add_u32 v18, {sT0}, v16')
    for t in range(2):
        for j in range(4):
            a('v_lshrrev_b32 v19, 1, v17'); a('v_lshlrev_b32 v19, 4, v19'); a('v_and_b32 v20, 1, v17'); a('v_lshl_add_u32 v19, v20, 2, v19')
            a(f'v_add_u32 v19, {8*t + j}, v19')
            r = 54 + 2 * (4*t + j)
            a(f'v_cmp_le_u32 s[{r}:{r+1}], v19, v18')
    a(f's_cmp_eq_u32 {sW}, 0'); a('s_cbranch_scc0 qk_mk')
    for r in range(54, 70): a(f's_mov_b32 s{r}, -1')
    a.label('qk_mk')
    a('v_mov_b32 v14, 0xff800000')
    a(f's_lshr_b32 {sT0}, {sIDX}, 3'); a(f's_lshl_b32 {sT0}, {sT0}, 14')
    a(f's_and_b32 {sT1}, {sIDX}, 7'); a(f's_lshl_b32 {sT1}, {sT1}, 10'); a(f's_add_u32 s53, {sT0}, {sT1}')
    a(f's_cmp_eq_u32 {sW}, 0'); a('s_cbranch_scc0 qk_su1')
    a('v_lshlrev_b32 v18, 7, v17'); a('v_lshl_add_u32 v18, v16, 4, v18'); a('v_add_u32 v0, s53, v18')
    a('v_and_b32 v18, 1, v17'); a('v_lshlrev_b32 v18, 6, v18'); a('v_lshl_add_u32 v18, v16, 3, v18')
    a('v_add_u32 v18, 512, v18'); a('v_add_u32 v8, s53, v18')
    a('s_branch qk_su3')
    a.label('qk_su1')
    a(f's_mul_i32 {sT0}, {sIDX}, 2560')
    a(f's_cmp_eq_u32 {sW}, 3'); a('s_cbranch_scc1 qk_su2')
    a(f's_sub_u32 {sT1}, {sW}, 1'); a(f's_lshl_b32 {sT2}, {sT1}, 10'); a(f's_add_u32 {sT2}, {sT2}, {sT0}'); a(f'v_add_u32 v0, {sT2}, v1')
    a(f's_lshl_b32 {sT2}, {sT1}, 8'); a(f's_add_u32 {sT2}, {sT2}, {sT0}'); a(f's_add_u32 {sT2}, {sT2}, 2048')
    a('v_lshlrev_b32 v18, 4, v16'); a(f'v_add_u32 v8, {sT2}, v18')
    a('s_branch qk_su3')
    a.label('qk_su2')
    a('v_add_u32 v0, s53, v1'); a(f'v_add_u32 v8, {sT0}, v1')
    a.label('qk_su3')
    a('s_mov_b32 s70, 0x00ff00ff'); a('s_mov_b32 s71, 0x00ff00ff')
    a('s_mov_b32 s72, 0'); a('s_mov_b32 s73, 0x00ff00ff')
    a('s_mov_b32 s74, 0'); a('s_mov_b32 s75, -1')
    a('s_mov_b32 s76, 0'); a('s_mov_b32 s77, 0x0000ffff')
    a('s_mov_b32 s78, -1'); a('s_mov_b32 s79, 0xff')
    a(f's_mov_b32 s80, {f32hex(SC)}'); a(f's_mov_b32 s81, {f32hex(SC)}')
    a(f's_mul_i32 s85, {sIDX}, 12288')
    a('s_mov_b32 s82, 0')
    def kq_dma(qoff):
        for (base, gbase, extra) in ((KXB, KX_BASE, None), (QXB, QX_BASE, qoff)):
            a(f's_add_u32 {sT3}, s85, {gbase}')
            if extra: a(f's_add_u32 m0, {extra}, {base}')
            else: a(f's_mov_b32 m0, {base}')
            for i in range(12):
                if i: a('s_add_u32 m0, m0, 1024'); a(f's_add_u32 {sT3}, {sT3}, 1024')
                a(f'buffer_load_dwordx4 v1, {SRD_WS}, {sT3} offen sc1 lds')
    a(f's_cmp_lg_u32 {sW}, 3'); a('s_cbranch_scc1 qk_nodma0')
    if P.get('wait_kq'): P['wait_kq'](a, 'qk0')
    kq_dma('s82')
    a.label('qk_nodma0')
    a(f's_mov_b32 {sSTEP}, 0')
    ACC = 16; AF = 40; WT = 80
    SM, S0, S1 = 88, 92, 16
    sc = [SM, SM+1, SM+2, SM+3, S0, S0+1, S0+2, S0+3, S1, S1+1, S1+2, S1+3]
    kreg = lambda ks, t: (80 + 4*t) if ks == 0 else AF + 4 * ((ks - 1) * 2 + t)
    a.label('qk_step')
    for i in range(24): a(f'v_mov_b32 v{ACC+i}, 0')
    mem_poll(a, 'qk_poll', AF, P)
    L = Lgkm(a); S = Stream(a, L)
    for c in range(10): L.issue(f'ds_read_b128 v[{AF+4*c}:{AF+4*c+3}], v1 offset:{memb(c)}', ('A', c))
    def wissue(c, ti):
        n = loc[(c, 1)][1]; b = WT + 8 * ti
        return [('lds', f'ds_read_b128 v[{b}:{b+3}], v11 offset:{n*2048}', ('w', c, 0)), ('lds', f'ds_read_b128 v[{b+4}:{b+7}], v11 offset:{n*2048+1024}', ('w', c, 1))]
    S.add(wissue(2, 0) + wissue(3, 1))
    def smf(c, t):
        cls, base = loc[(c, t)]; acc = ACC + 4*t
        if cls == 'l':
            L.need(('w', c, 1)); b = WT + 8 * (c % 2)
            a(f'v_smfmac_f32_16x16x64_bf16 v[{acc}:{acc+3}], v[{AF+4*c}:{AF+4*c+3}], v[{b}:{b+7}], v5')
        else:
            a(f'v_smfmac_f32_16x16x64_bf16 v[{acc}:{acc+3}], v[{AF+4*c}:{AF+4*c+3}], {cls}[{base}:{base+7}], v5')
    xw = lambda t: f'ds_write_b32 v{3 if t < 3 else 12}, v{ACC + 4*t + 2} offset:{(t % 3)*512}'
    def tl(t): return tail_ops(ACC + 4*t, ACC + 4*t + 2, None) + [('lds', xw(t), ('xw', t))]
    for c in range(10):
        L.need(('A', c))
        smf(c, 0); S.slot()
        smf(c, 1)
        if 2 <= c and c + 2 < 10: S.add(wissue(c + 2, c % 2))
        S.slot()
    S.flush()
    kld = lambda ks, t: ('lds', f'ds_read_b128 v[{kreg(ks, t)}:{kreg(ks, t)+3}], v{6+t} offset:{ks*2048}', ('k', ks, t))
    init = [f'v_cndmask_b32_e64 v{SM+j}, v14, 0, s[74:75]' for j in range(4)] + [f'v_cndmask_b32_e64 v{S0+j}, v14, 0, s[{54+2*j}:{55+2*j}]' for j in range(4)]
    pend = [None, None] + tl(0) + tl(1) + [kld(0, 0), kld(0, 1)] + init
    for c in range(10):
        for t in passes[1]:
            smf(c, t)
            if pend:
                o = pend.pop(0)
                if o is not None: S.add([o]); S.slot()
    S.add(pend); S.flush()
    init1 = [f'v_cndmask_b32_e64 v{S1+j}, v14, 0, s[{62+2*j}:{63+2*j}]' for j in range(4)]
    pend = [None, None] + tl(2) + tl(3) + init1
    for c in range(10):
        for t in passes[2]:
            smf(c, t)
            if pend:
                o = pend.pop(0)
                if o is not None: S.add([o]); S.slot()
        if c >= 1:
            ks, t = divmod(c - 1, 2)
            S.add([kld(ks + 1, t)]); S.slot()
    S.add(pend); S.flush()
    prof(a, 4, P['prof'])
    t4, t5 = tl(4), tl(5)
    for x, y in zip(t4, t5): S.add([x, y])
    S.add([kld(5, 1)])
    S.flush()
    a('s_waitcnt lgkmcnt(0)')
    a('s_barrier')
    prof(a, 1, P['prof'])
    a(f's_cmp_eq_u32 {sW}, 3'); a('s_cbranch_scc1 qk_w3')
    def scores(token):
        L = Lgkm(a)
        if token: XR = [20, 24]; QR = [28, 32, 36]
        else: XR = [20, 24, 28, 32, 36]
        nx = len(XR)
        def issue_x(ks):
            b = XR[ks % nx]
            L.issue(f'ds_read_b64_tr_b16 v[{b}:{b+1}], v13 offset:{ks*1024}', ('x0', ks))
            L.issue(f'ds_read_b64_tr_b16 v[{b+2}:{b+3}], v13 offset:{ks*1024+512}', ('x1', ks))
        def issue_q(ks):
            b = QR[ks % 3]
            L.issue(f'ds_read_b128 v[{b}:{b+3}], v10 offset:{ks*2048}', ('q', ks))
        for ks in range(nx):
            if token: issue_q(ks)
            issue_x(ks)
        if token: issue_q(2)
        for ks in range(6):
            b = XR[ks % nx]; B = QR[ks % 3] if token else b
            if token: L.need(('q', ks))
            L.need(('x1', ks))
            a(f'v_mfma_f32_16x16x32_bf16 v[{S0}:{S0+3}], v[{kreg(ks,0)}:{kreg(ks,0)+3}], v[{B}:{B+3}], v[{S0}:{S0+3}]')
            a(f'v_mfma_f32_16x16x32_bf16 v[{S1}:{S1+3}], v[{kreg(ks,1)}:{kreg(ks,1)+3}], v[{B}:{B+3}], v[{S1}:{S1+3}]')
            a(f'v_mfma_f32_16x16x32_bf16 v[{SM}:{SM+3}], v[{b}:{b+3}], v[{B}:{B+3}], v[{SM}:{SM+3}]')
            if ks + nx < 6: issue_x(ks + nx)
            if token and ks + 3 < 6: issue_q(ks + 3)
    def softmax():
        m, t0 = 20, 22
        a(f'v_max3_f32 v{m}, v{sc[0]}, v{sc[1]}, v{sc[2]}'); a(f'v_max3_f32 v{t0}, v{sc[3]}, v{sc[4]}, v{sc[5]}')
        a(f'v_max3_f32 v{m}, v{m}, v{sc[6]}, v{sc[7]}'); a(f'v_max3_f32 v{t0}, v{t0}, v{sc[8]}, v{sc[9]}')
        a(f'v_max3_f32 v{m}, v{m}, v{sc[10]}, v{sc[11]}'); a(f'v_max_f32 v{m}, v{m}, v{t0}')
        def xred(op):
            for sw in ('v_permlane16_swap_b32', 'v_permlane32_swap_b32'):
                a(f'v_mov_b32 v{t0}, v{m}'); a(f'{sw} v{t0}, v{m}'); a(f'{op} v{m}, v{m}, v{t0}')
        xred('v_max_f32')
        a(f'v_mul_f32 v{m}, s80, v{m}')
        for i in range(0, 12, 2):
            r = sc[i]; a(f'v_pk_fma_f32 v[{r}:{r+1}], v[{r}:{r+1}], s[80:81], v[{m}:{m+1}] op_sel_hi:[1,1,0] neg_lo:[0,0,1] neg_hi:[0,0,1]')
        for i in range(12): a(f'v_exp_f32 v{sc[i]}, v{sc[i]}')
        a(f'v_pk_add_f32 v[24:25], v[{sc[0]}:{sc[0]+1}], v[{sc[2]}:{sc[2]+1}]')
        a(f'v_pk_add_f32 v[26:27], v[{sc[4]}:{sc[4]+1}], v[{sc[6]}:{sc[6]+1}]')
        a(f'v_pk_add_f32 v[28:29], v[{sc[8]}:{sc[8]+1}], v[{sc[10]}:{sc[10]+1}]')
        a('v_pk_add_f32 v[24:25], v[24:25], v[26:27]'); a('v_pk_add_f32 v[24:25], v[24:25], v[28:29]')
        a(f'v_add_f32 v{m}, v24, v25')
        xred('v_add_f32')
        a(f'v_rcp_f32 v{m}, v{m}')
        for i in range(0, 12, 2):
            r = sc[i]; a(f'v_pk_mul_f32 v[{r}:{r+1}], v[{r}:{r+1}], v[{m}:{m+1}] op_sel_hi:[1,0] clamp')
        for i in range(2): a(f'v_cvt_pk_bf16_f32 v{32+i}, v{S0+2*i}, v{S0+2*i+1}')
        for i in range(2): a(f'v_cvt_pk_bf16_f32 v{34+i}, v{S1+2*i}, v{S1+2*i+1}')
    a(f's_cmp_eq_u32 {sW}, 0'); a('s_cbranch_scc0 qk_tok')
    scores(False)
    prof(a, 5, P['prof'])
    softmax()
    a('s_mov_b64 exec, s[70:71]')
    a(f'buffer_store_dwordx4 v[32:35], v0, {SRD_WS}, {sP[0]} offen{store_flag(P["plainP"])}')
    a(f'v_cvt_pk_bf16_f32 v36, v{SM}, v{SM+1}'); a(f'v_cvt_pk_bf16_f32 v37, v{SM+2}, v{SM+3}')
    a('s_mov_b64 exec, s[72:73]')
    a(f'buffer_store_dwordx2 v[36:37], v8, {SRD_WS}, {sP[0]} offen{store_flag(P["plainP"])}')
    a('s_mov_b64 exec, -1')
    prof(a, 2, P['prof'])
    a('s_barrier')
    prof_flush(a, P['prof'])
    a('s_branch qk_end')
    a.label('qk_tok')
    if P.get('noPT'): a('s_barrier'); a('s_branch qk_end')
    a(f's_sub_u32 {sT0}, {sW}, 1'); a(f's_lshl_b32 {sT0}, {sT0}, 10'); a(f's_add_u32 {sT0}, {sT0}, s82'); a(f's_add_u32 {sT0}, {sT0}, {QXB}')
    a(f'v_add_u32 v10, {sT0}, v1')
    scores(True)
    softmax()
    a(f'buffer_store_dwordx4 v[32:35], v0, {SRD_WS}, {sPT[0]} offen sc1')
    a(f'v_cvt_pk_bf16_f32 v36, v{SM}, v{SM+1}'); a(f'v_cvt_pk_bf16_f32 v38, v{SM+2}, v{SM+3}')
    a('v_permlane16_swap_b32 v36, v37'); a('v_permlane16_swap_b32 v38, v39')
    a('s_mov_b64 exec, s[76:77]')
    a(f'buffer_store_dwordx4 v[36:39], v8, {SRD_WS}, {sPT[0]} offen sc1')
    a('s_mov_b64 exec, -1')
    a('s_barrier')
    a('s_branch qk_end')
    a.label('qk_w3')
    a('s_barrier')
    if P.get('noW3dma'):
        for r in range(32, 36): a(f'v_mov_b32 v{r}, -1')
        a('s_mov_b64 exec, s[78:79]')
        a(f'buffer_store_dwordx4 v[32:35], v0, {SRD_WS}, {sP[2]} offen sc1')
        a('s_mov_b64 exec, -1'); a('s_branch qk_end')
    for r in range(32, 36): a(f'v_mov_b32 v{r}, -1')
    a('s_mov_b64 exec, s[78:79]')
    a(f'buffer_store_dwordx4 v[32:35], v0, {SRD_WS}, {sP[2]} offen{store_flag(P["plainP"])}')
    a('s_mov_b64 exec, -1')
    a(f'buffer_store_dwordx4 v[32:35], v8, {SRD_WS}, {sPT[1]} offen sc1')
    a(f'buffer_store_dwordx4 v[32:35], v8, {SRD_WS}, {sPT[1]} offen offset:1024 sc1')
    a(f's_mov_b64 exec, {LOW32}')
    a(f'buffer_store_dwordx4 v[32:35], v8, {SRD_WS}, {sPT[1]} offen offset:2048 sc1')
    a('s_mov_b64 exec, -1')
    a(f's_cmp_ge_u32 {sSTEP}, 63'); a('s_cbranch_scc1 qk_end')
    a(f's_add_u32 s85, s85, {32*12288}')
    if P.get('wait_kq'): P['wait_kq'](a, 'qk1')
    a(f's_xor_b32 {sT1}, s82, 12288')
    kq_dma(sT1)
    a.label('qk_end')
    a('s_xor_b32 s82, s82, 12288')
    rotate(a, sMEM); rotate(a, sP); rotate(a, sPT)
    a(f's_add_u32 {sSTEP}, {sSTEP}, 1')
    a(f's_cmp_lt_u32 {sSTEP}, {P["steps"]}')
    a('s_cbranch_scc1 qk_step')
    a('s_branch done')

def gen_vo(a, P):
    YB = 8192
    keysV = [('v', c, t) for c in range(10) for t in range(3)]
    keysO = [('o', c, t) for t in range(10) for c in range(3)]
    lds_list = [('v', c, 1) for c in (3, 5, 7, 9)] + [('o', 1, t) for t in (2, 4, 6, 8)]
    loc = place(keysV + keysO, lds_list)
    a(f's_mul_i32 s49, {sW}, {36*1024}')
    dma_voffs(a, 3, 6, 12, 12288, 10, 28); dma_voffs(a, 5, 10, 18, 1280, 10, 28)
    tr_base(a, 8, 96, 10, 28); tr_base(a, 9, 160, 10, 28)
    TMP = 32
    units = []
    for c in range(10):
        dests = [(('v', TMP + 8*loc[('v', c, tl)][1]) if loc[('v', c, tl)][0] == 'l' else loc[('v', c, tl)]) for tl in range(3)]
        soff = [f's_mul_i32 {sT3}, {sIDX}, 384', f's_mul_i32 {sT2}, {sW}, 96', f's_add_u32 {sT3}, {sT3}, {sT2}', f's_add_u32 {sT3}, {sT3}, {64*c*12288}']
        units.append(dict(srd=SRD_A, soff=soff, T=3, voffs=list(range(12, 18)), dests=dests, RB=96))
    for c in range(3):
        for u2 in range(2):
            dests = [(('v', TMP + 8*loc[('o', c, 5*u2+tl)][1]) if loc[('o', c, 5*u2+tl)][0] == 'l' else loc[('o', c, 5*u2+tl)]) for tl in range(5)]
            soff = [f's_mul_i32 {sT3}, {sIDX}, {192*1280}', f's_mul_i32 {sT2}, {sW}, 320', f's_add_u32 {sT3}, {sT3}, {sT2}', f's_add_u32 {sT3}, {sT3}, {64*c*1280 + 160*u2}']
            units.append(dict(srd=SRD_B, soff=soff, T=5, voffs=list(range(18, 28)), dests=dests, RB=160))
    load_weights(a, units, {96: 8, 160: 9})
    a(f's_lshl_b32 {sT0}, {sW}, 14'); a(f's_add_u32 {sT0}, {sT0}, {WL_BASE}')
    a('v_lshlrev_b32 v11, 4, v10'); a(f'v_add_u32 v11, {sT0}, v11')
    finish_lds_tiles(a, loc, TMP, 11)
    get_parity(a, 'vo')
    mem_setup(a)
    a('v_and_b32 v16, 15, v10'); a('v_lshrrev_b32 v17, 4, v10')
    a('v_and_b32 v18, 1, v17'); a('v_lshlrev_b32 v18, 1, v18'); a('v_lshrrev_b32 v19, 5, v10'); a('v_add_u32 v18, v18, v19'); a('v_lshlrev_b32 v18, 2, v18')
    a('v_lshl_add_u32 v18, v16, 4, v18'); a(f's_mul_i32 {sT0}, {sW}, 768'); a(f's_add_u32 {sT0}, {sT0}, {YB}'); a(f'v_add_u32 v12, {sT0}, v18')
    a('v_bfe_u32 v18, v10, 2, 2'); a('v_and_b32 v19, 3, v10'); a('v_lshlrev_b32 v20, 4, v17')
    a('v_lshrrev_b32 v21, 1, v18'); a('v_lshl_add_u32 v20, v21, 2, v20'); a('v_lshrrev_b32 v21, 1, v19'); a('v_lshl_add_u32 v20, v21, 1, v20')
    a('v_and_b32 v21, 1, v18'); a('v_add_u32 v20, v20, v21'); a('v_lshlrev_b32 v20, 4, v20'); a('v_and_b32 v21, 1, v19'); a('v_lshl_add_u32 v20, v21, 3, v20')
    a(f'v_add_u32 v13, {YB}, v20')
    a(f's_mul_i32 {sT0}, {sW}, {10*16384}'); a(f's_lshl_b32 {sT1}, {sIDX}, 8'); a(f's_add_u32 {sT0}, {sT0}, {sT1}')
    a('v_lshlrev_b32 v18, 14, v17'); a('v_lshl_add_u32 v18, v16, 4, v18'); a(f'v_add_u32 v14, {sT0}, v18')
    a('v_lshrrev_b32 v18, 5, v10'); a('v_add_u32 v18, 8, v18'); a('v_lshlrev_b32 v18, 14, v18'); a('v_lshl_add_u32 v18, v16, 4, v18'); a(f'v_add_u32 v15, {sT0}, v18')
    a('s_mov_b32 s70, 0x0000ffff'); a('s_mov_b32 s71, 0x0000ffff')
    for j in range(4): a(f'v_mov_b32 v{6+j if j < 2 else 0}, -1') if False else None
    a(f's_mov_b32 {sSTEP}, 0')
    UA = 16; VA = 56; AF = 68; WT = 88
    ar = lambda c: AF + 4 * (c % 5)
    a.label('vo_step')
    for i in range(52): a(f'v_mov_b32 v{UA+i}, 0')
    mem_poll(a, 'vo_poll', AF, P)
    L = Lgkm(a); S = Stream(a, L)
    for c in range(5): L.issue(f'ds_read_b128 v[{ar(c)}:{ar(c)+3}], v1 offset:{memb(c)}', ('A', c))
    def wissue(key):
        n = loc[key][1]
        return [('lds', f'ds_read_b128 v[{WT}:{WT+3}], v11 offset:{n*2048}', ('w', key, 0)), ('lds', f'ds_read_b128 v[{WT+4}:{WT+7}], v11 offset:{n*2048+1024}', ('w', key, 1))]
    def smf(key, acc, A):
        cls, base = loc[key]
        if cls == 'l':
            L.need(('w', key, 1)); a(f'v_smfmac_f32_16x16x64_bf16 v[{acc}:{acc+3}], v[{A}:{A+3}], v[{WT}:{WT+7}], v5')
        else:
            a(f'v_smfmac_f32_16x16x64_bf16 v[{acc}:{acc+3}], v[{A}:{A+3}], {cls}[{base}:{base+7}], v5')
    rearm = [f'v_mov_b32 v{r}, -1' for r in (6, 7, 8, 9)]
    rearm += [f's_add_u32 {sT1}, {sU[2]}, 0', f'buffer_store_dwordx4 v[6:9], v14, {SRD_WS}, {sT1} offen sc1',
              f's_add_u32 {sT1}, {sU[2]}, {4*16384}', f'buffer_store_dwordx4 v[6:9], v14, {SRD_WS}, {sT1} offen sc1',
              ('fn', lambda: (a('s_mov_b64 exec, s[70:71]'), a(f'buffer_store_dwordx4 v[6:9], v15, {SRD_WS}, {sU[2]} offen sc1'), a('s_mov_b64 exec, -1')))]
    if P.get('noU'): rearm = []
    for c in range(10):
        L.need(('A', c))
        if c in (1, 3, 5, 7): S.f = wissue(('v', c + 2, 1)) + S.f
        for t in range(3):
            smf(('v', c, t), VA + 4*t, ar(c))
            if t == 1 and c in (3, 5, 7) : pass
            if not (loc[('v', c, 1)][0] == 'l' and t == 0): S.slot()
        if c + 5 < 10: L.issue(f'ds_read_b128 v[{ar(c)}:{ar(c)+3}], v1 offset:{memb(c+5)}', ('A', c + 5))
        if c == 5: S.add(rearm)
    S.flush()
    prof(a, 4, P['prof'])
    tls = [tail_ops(VA + 4*t, VA + 4*t + 2, None) + [('lds', f'ds_write_b32 v12, v{VA + 4*t + 2} offset:{t*256}', ('yw', t))] for t in range(3)]
    for x in zip(*tls): S.add(list(x))
    S.flush()
    a('s_waitcnt lgkmcnt(0)')
    a('s_barrier')
    prof(a, 1, P['prof'])
    L = Lgkm(a); S = Stream(a, L)
    for c in range(3):
        L.issue(f'ds_read_b64_tr_b16 v[{AF+4*c}:{AF+4*c+1}], v13 offset:{c*1024}', ('A0', c))
        L.issue(f'ds_read_b64_tr_b16 v[{AF+4*c+2}:{AF+4*c+3}], v13 offset:{c*1024+128}', ('A', c))
    S.add(wissue(('o', 1, 2)))
    S.flush()
    def pack4(g):
        ops = []
        D = [UA + 4*(4*g + i) + 2 for i in range(4)]
        tl = [tail_ops(UA + 4*(4*g + i), D[i], None) for i in range(4)]
        for x in zip(*tl): ops += list(x)
        R = 56 + 4 * (g % 2)
        ops += [f'v_min_u32 v{R+i}, -2, v{D[i]}' for i in range(4)]
        ops += [f'v_permlane32_swap_b32 v{R}, v{R+2}', f'v_permlane32_swap_b32 v{R+1}, v{R+3}',
                f'v_permlane16_swap_b32 v{R}, v{R+1}', f'v_permlane16_swap_b32 v{R+2}, v{R+3}']
        ops += [f's_add_u32 {sT1}, {sU[0]}, {g*4*16384}']
        if not P.get('noU'): ops += [f'buffer_store_dwordx4 v[{R}:{R+3}], v14, {SRD_WS}, {sT1} offen sc1']
        return ops
    for t in range(10):
        for c in range(3):
            if t == 0: L.need(('A', c))
            smf(('o', c, t), UA + 4*t, AF + 4*c)
            if c == 1 and t in (2, 4, 6): S.f = wissue(('o', 1, t + 2)) + S.f
            n = 1 if t < 4 else 3
            S.slot(n + (1 if (c == 1 and t in (2, 4, 6)) else 0))
        if t == 3: S.add([None] if False else []); S.add(['s_nop 0'] + pack4(0))
        if t == 7: S.flush(); S.add(['s_nop 0'] + pack4(1))
    S.flush()
    prof(a, 5, P['prof'])
    D = [UA + 32 + 2, UA + 36 + 2]
    tl = [tail_ops(UA + 32, D[0], None), tail_ops(UA + 36, D[1], None)]
    for x in zip(*tl): S.add(list(x))
    S.add([f'v_min_u32 v64, -2, v{D[0]}', f'v_min_u32 v66, -2, v{D[1]}', 'v_permlane32_swap_b32 v64, v66',
           'v_permlane16_swap_b32 v64, v65', 'v_permlane16_swap_b32 v66, v67', 's_mov_b64 exec, s[70:71]'])
    if not P.get('noU'): S.add([f'buffer_store_dwordx4 v[64:67], v15, {SRD_WS}, {sU[0]} offen sc1'])
    S.add(['s_mov_b64 exec, -1'])
    S.flush()
    prof(a, 2, P['prof'])
    if P['prof']:
        a(f's_cmp_eq_u32 {sW}, 0'); a('s_cbranch_scc0 vo_nofl')
        prof_flush(a, P['prof'], 56)
        a.label('vo_nofl')
    rotate(a, sMEM); rotate(a, sU)
    a(f's_add_u32 {sSTEP}, {sSTEP}, 1')
    a(f's_cmp_lt_u32 {sSTEP}, {P["steps"]}')
    a('s_cbranch_scc1 vo_step')
    a('s_branch done')

g1.gen_qk = gen_qk
g1.gen_vo = gen_vo
gen_chain_kernel = g1.gen_chain_kernel

if __name__ == '__main__':
    import sys
    fn = sys.argv[1]
    P = dict(prof=0, par=-1, plainP=0, plainM=0, steps=64)
    for kv in sys.argv[2:]:
        k, v = kv.split('='); P[k] = int(v)
    a = gen_chain_kernel(P)
    s = '; @launch kernel=chain_kernel grid=(256,1,1) block=(256,1,1) lds=163840\n.amdgcn_target "amdgcn-amd-amdhsa--gfx950"\n.text\n'
    s += head('chain_kernel') + a.text() + '.section .rodata,"a"\n' + desc('chain_kernel')
    open(fn, 'w').write(s)
    print(fn, 'instructions:', a.count())
```

```python
from asmlib import *
from layout import *
from gen_chain import Lgkm, mk_srd, f32hex

class Vm:
    def __init__(self, a): self.a = a; self.q = []; self.seen = set()
    def issue(self, text, tag):
        self.seen.add(tag)
        self.a(text); self.q.append(tag)
        assert len(self.q) <= 63
    def need(self, tag):
        assert tag in self.seen, ('vmem op never issued', tag)
        if tag not in self.q: return
        i = len(self.q) - 1 - self.q[::-1].index(tag)
        self.a(f's_waitcnt vmcnt({len(self.q) - 1 - i})')
        self.q = self.q[i + 1:]
    def drain(self):
        self.a('s_waitcnt vmcnt(0)'); self.q = []

SRD_WS = 's[4:7]'; SRD_W = 's[8:11]'; SRD_W2 = 's[12:15]'
sW = 's24'
gT0, gT1, gT2, gT3 = 's40', 's41', 's42', 's43'
sH = 's54'
sM = 's55'
sWOFF = 's56'
sBOFF = 's57'
sOUT = 's58'
NBUF = 4; STG = 24576

def lane_consts(a, NT):
    pass

def phase1(a, V, NT, nst, ntile, dma_fn, ndma, tr_fn, bsrc_srd, acc0, looped=False):
    L = Lgkm(a)
    nks = nst * 4
    BD = 8; BR = 10
    breg = lambda ks, tt: 8 * (ks % BR) + 4 * tt
    areg = lambda ks, t: 16 + 24 * (ks % 2) + 4 * t
    def b_issue(ks):
        if ks >= nks: return
        for tt in range(NT):
            r = breg(ks, tt)
            off = (ks % 4) * 1024
            V.issue(f'buffer_load_dwordx4 a[{r}:{r+3}], v{11+tt}, {bsrc_srd}, s{59 + ((ks//4) % 3)} offen offset:{off} sc1', ('B', ks))
    def b_soff(st):
        if st * 4 < nks: a(f's_add_u32 s{59 + (st % 3)}, {sBOFF}, {st * 4096}')
    def a_issue(ks, t, rd):
        st = ks // 4
        vr, imm = tr_fn(t, ks % 4, rd, st % NBUF)
        r = areg(ks, t) + 2 * rd
        L.issue(f'ds_read_b64_tr_b16 v[{r}:{r+1}], v{vr} offset:{imm}', ('A', ks, t, rd))
    for st in range(min(3, nst)): dma_fn(V, st, st % NBUF)
    for st in range(3): b_soff(st)
    for ks in range(BD): b_issue(ks)
    V.need(('W', 0))
    a('s_barrier')
    for t in range(ntile):
        for rd in range(2): a_issue(0, t, rd)
        if len(L.q) >= 12: pass
    for ks in range(nks):
        st, j = divmod(ks, 4)
        L.drain()
        if j == 3 and st + 1 < nst:
            V.need(('W', st + 1))
            a('s_barrier')
        V.need(('B', ks))
        fill = []
        if ks + 1 < nks:
            for t in range(ntile):
                for rd in range(2): fill.append(('a', ks + 1, t, rd))
        if j == 3 and st + 3 < nst: fill.append(('dma', st + 3))
        if (ks + BD) % 4 == 0: fill.insert(0, ('bs', (ks + BD) // 4))
        fill.append(('b', ks + BD))
        nm = ntile * NT
        per = -(-len(fill) // nm)
        fi = 0
        for t in range(ntile):
            for tt in range(NT):
                acc = acc0 + 16 * (t * NT + tt)
                c = '0' if ks == 0 else f'v[{acc}:{acc+15}]'
                ar = areg(ks, t); br = breg(ks, tt)
                a(f'v_mfma_f32_32x32x16_bf16 v[{acc}:{acc+15}], v[{ar}:{ar+3}], a[{br}:{br+3}], {c}')
                for _ in range(per):
                    if fi < len(fill):
                        f = fill[fi]; fi += 1
                        if f[0] == 'a': a_issue(f[1], f[2], f[3])
                        elif f[0] == 'dma': dma_fn(V, f[1], f[1] % NBUF)
                        elif f[0] == 'bs': b_soff(f[1])
                        elif f[0] == 'b': b_issue(f[1])
        assert fi == len(fill)

def dma_generic(voffs, srd_of, soff_of, lds_of):
    def fn(V, st, buf):
        a = V.a
        for i, vo in enumerate(voffs):
            so = soff_of(a, st, i)
            a(f's_add_u32 m0, s62, {buf*STG + lds_of(i)}')
            V.issue(f'buffer_load_dwordx4 v{vo}, {srd_of(i)}, {so} offen lds', ('W', st))
    return fn

def divmod_regs(a, per, nregs, base, stride, rowadd_sgpr, swz, vt):
    magic = {24: (2731, 16), 12: (5462, 16), 20: (3277, 16)}[per]
    for i in range(nregs):
        a(f'v_add_u32 v{vt}, {i*64}, v10')
        a(f'v_mul_u32_u24 v{vt+1}, {magic[0]}, v{vt}')
        a(f'v_lshrrev_b32 v{vt+1}, {magic[1]}, v{vt+1}')
        a(f'v_mul_u32_u24 v{vt+2}, {per}, v{vt+1}')
        a(f'v_sub_u32 v{vt+2}, v{vt}, v{vt+2}')
        if swz:
            a(f'v_lshlrev_b32 v{vt+3}, 1, v{vt+1}'); a(f'v_and_b32 v{vt+3}, 4, v{vt+3}')
            a(f'v_xor_b32 v{vt+2}, v{vt+2}, v{vt+3}')
        a(f'v_lshlrev_b32 v{vt+2}, 4, v{vt+2}')
        a(f'v_add_u32 v{vt+1}, {rowadd_sgpr}, v{vt+1}')
        a(f'v_mul_u32_u24 v{vt+1}, {stride}, v{vt+1}')
        a(f'v_add_u32 v{base+i}, v{vt+1}, v{vt+2}')

def check_magic():
    for per, (m, s) in {24: (2731, 16), 12: (5462, 16), 20: (3277, 16)}.items():
        for i in range(384): assert (i * m) >> s == i // per, (per, i)
check_magic()

def tr_lane(a, dst, RB, rowmode, vt):
    a(f'v_lshrrev_b32 v{vt}, 5, v10')
    a(f'v_lshlrev_b32 v{vt}, {3 if rowmode == 0 else 2}, v{vt}')
    a(f'v_bfe_u32 v{vt+1}, v10, 2, 2')
    a(f'v_add_u32 v{vt}, v{vt}, v{vt+1}')
    a(f'v_mul_u32_u24 v{vt}, {RB}, v{vt}')
    a(f'v_bfe_u32 v{vt+2}, v10, 4, 1'); a(f'v_lshl_add_u32 v{vt}, v{vt+2}, 5, v{vt}')
    a(f'v_and_b32 v{vt+2}, 3, v10'); a(f'v_lshl_add_u32 v{dst}, v{vt+2}, 3, v{vt}')
    a(f'v_lshrrev_b32 v{vt}, 1, v{vt+1}')

def setup_common(a, NT):
    a('v_and_b32 v10, 63, v0'); a('v_lshlrev_b32 v1, 4, v10')
    a(f's_mul_i32 s62, {sW}, 6144')
    a(f's_lshl_b32 s63, {sW}, 4')

def b_setup(a, NT, tile_stride):
    a(f's_mul_i32 {gT0}, {sW}, {NT * tile_stride}')
    for tt in range(NT): a(f'v_add_u32 v{11+tt}, {gT0}, v1') if tt == 0 else a(f'v_add_u32 v{11+tt}, {tile_stride}, v{11+tt-1}')

def store_pairs(a, acc, vaddr, soff, imm0, imm1, regsA, regsB, tmp, flag=' sc1'):
    for pc, (regs, imm) in enumerate(((regsA, imm0), (regsB, imm1))):
        t = tmp + 4 * pc
        for d in range(4): a(f'v_cvt_pk_bf16_f32 v{t+d}, v{acc+regs[2*d]}, v{acc+regs[2*d+1]}')
        a(f'buffer_store_dwordx4 v[{t}:{t+3}], v{vaddr}, {SRD_WS}, {soff} offen offset:{imm}{flag}')

KQ_A = [0, 1, 2, 3, 8, 9, 10, 11]; KQ_B = [4, 5, 6, 7, 12, 13, 14, 15]
VO_A = list(range(8)); VO_B = list(range(8, 16))

def gen_proj(a, NT, lab):
    ACC = 64
    divmod_regs(a, 24, 6, 2 + 2, 12288, 's63', True, 16)
    tr_lane(a, 13, 384, 0, 16)
    a('v_lshlrev_b32 v17, 6, v16')
    a('v_add_u32 v2, v13, v17')
    a('v_sub_u32 v3, 64, v17'); a('v_add_u32 v3, v13, v3')
    a('v_add_u32 v13, 49152, v2'); a('v_add_u32 v15, 49152, v3')
    b_setup(a, NT, 40960)
    a(f's_mul_i32 {sBOFF}, {sM}, {4*NT*40960}'); a(f's_add_u32 {sBOFF}, {sBOFF}, {XN_BASE}')
    a(f's_mul_i32 {sWOFF}, {sH}, 384')
    def soff(a_, st, i):
        if i == 0: a_(f's_add_u32 {gT3}, {sWOFF}, {st*64*12288}')
        return gT3
    dma = dma_generic([4, 5, 6, 7, 8, 9], lambda i: SRD_W, soff, lambda i: i * 1024)
    def tr(t, j, rd, buf):
        base = ((2, 3), (13, 15))[buf // 2][t % 2]
        return base, (buf % 2)*STG + (16*j + 4*rd) * 384 + (t - (t % 2)) * 64
    V = Vm(a)
    phase1(a, V, NT, 10, 6, dma, 6, tr, SRD_WS, ACC)
    a(f's_cmp_eq_u32 s64, 2'); a(f's_cbranch_scc1 {lab}_vo')
    a('v_and_b32 v16, 31, v10'); a('v_lshrrev_b32 v17, 5, v10')
    a(f's_cmp_eq_u32 s64, 1'); a(f's_cbranch_scc1 {lab}_q')
    a('v_lshrrev_b32 v18, 4, v16'); a('v_lshlrev_b32 v18, 1, v18'); a('v_bfe_u32 v19, v16, 2, 1'); a('v_add_u32 v18, v18, v19')
    a('v_lshlrev_b32 v18, 3, v18'); a('v_and_b32 v19, 3, v16'); a('v_add_u32 v18, v18, v19')
    a('v_bfe_u32 v19, v16, 3, 1'); a('v_lshl_add_u32 v18, v19, 2, v18')
    a('v_and_b32 v19, 16, v18'); a('v_lshrrev_b32 v20, 1, v19'); a('v_lshrrev_b32 v19, 2, v19'); a('v_xor_b32 v18, v18, v19'); a('v_xor_b32 v18, v18, v20')
    a('v_lshlrev_b32 v18, 4, v18'); a('v_lshl_add_u32 v14, v17, 9, v18')
    a(f's_mov_b32 {gT0}, {KX_BASE}'); a(f's_mov_b32 {gT1}, 1024')
    a(f's_branch {lab}_kq')
    a.label(f'{lab}_q')
    a('v_lshrrev_b32 v18, 4, v16'); a('v_lshlrev_b32 v18, 10, v18'); a('v_lshl_add_u32 v18, v17, 8, v18')
    a('v_and_b32 v19, 15, v16'); a('v_lshl_add_u32 v14, v19, 4, v18')
    a(f's_mov_b32 {gT0}, {QX_BASE}'); a(f's_mov_b32 {gT1}, 512')
    a.label(f'{lab}_kq')
    a(f'v_add_u32 v15, {gT1}, v14')
    a(f's_lshl_b32 {gT2}, {sM}, 2'); a(f's_add_u32 {gT2}, {gT2}, {sW}'); a(f's_mul_i32 {gT2}, {gT2}, {NT*32*12288}')
    a(f's_mul_i32 {gT3}, {sH}, 12288'); a(f's_add_u32 {gT2}, {gT2}, {gT3}'); a(f's_add_u32 {gT2}, {gT2}, {gT0}')
    for tt in range(NT):
        for t in range(6):
            acc = ACC + 16 * (t * NT + tt)
            a(f's_add_u32 {gT3}, {gT2}, {tt*32*12288 + t*2048}')
            for pc, regs in enumerate((KQ_A, KQ_B)):
                tmp = 16 + 8 * (t % 2) + 4 * pc
                for d in range(4): a(f'v_cvt_pk_bf16_f32 v{tmp+d}, v{acc+regs[2*d]}, v{acc+regs[2*d+1]}')
                a(f'buffer_store_dwordx4 v[{tmp}:{tmp+3}], v{14+pc}, {SRD_WS}, {gT3} offen sc1')
    a(f's_branch {lab}_end')
    a.label(f'{lab}_vo')
    a('s_nop 7')
    a('s_barrier')
    PK = 64
    for t in range(6):
        for tt in range(NT):
            src = ACC + 16 * (t * NT + tt); dst = PK + 8 * (t * NT + tt)
            for d in range(8): a(f'v_cvt_pk_bf16_f32 v{dst+d}, v{src+2*d}, v{src+2*d+1}')
    A2 = PK + 8 * 6 * NT
    a('v_lshrrev_b32 v16, 3, v10'); a('v_and_b32 v17, 7, v10')
    a('v_lshlrev_b32 v18, 1, v16'); a('v_and_b32 v18, 4, v18'); a('v_xor_b32 v17, v17, v18'); a('v_lshlrev_b32 v17, 4, v17')
    a(f's_mul_i32 {gT0}, {sW}, 48'); a(f'v_add_u32 v16, {gT0}, v16'); a('v_mul_u32_u24 v16, 1280, v16'); a('v_add_u32 v4, v16, v17')
    tr_lane(a, 13, 128, 1, 16)
    a('v_lshlrev_b32 v17, 6, v16')
    a('v_add_u32 v2, v13, v17'); a('v_sub_u32 v3, 64, v17'); a('v_add_u32 v3, v13, v3')
    a('v_add_u32 v13, 49152, v2'); a('v_add_u32 v15, 49152, v3')
    a('v_bfe_u32 v16, v10, 4, 1'); a('v_lshlrev_b32 v16, 15, v16'); a('v_lshrrev_b32 v17, 5, v10'); a('v_lshl_add_u32 v16, v17, 8, v16')
    a('v_and_b32 v17, 15, v10'); a('v_lshl_add_u32 v14, v17, 4, v16')
    a(f's_mul_i32 {sWOFF}, {sH}, {192*1280}')
    a(f's_lshl_b32 {gT2}, {sM}, 2'); a(f's_add_u32 {gT2}, {gT2}, {sW}'); a(f's_mul_i32 {sOUT}, {gT2}, {NT*40*32768}')
    a(f's_lshl_b32 {gT3}, {sH}, 10'); a(f's_add_u32 {sOUT}, {sOUT}, {gT3}'); a(f's_add_u32 {sOUT}, {sOUT}, {VO_BASE}')
    V = Vm(a); L = Lgkm(a)
    def dma2(cc):
        for i in range(6):
            a(f's_add_u32 {gT3}, {sWOFF}, {cc*128 + i*8*1280}')
            a(f's_add_u32 m0, s62, {(cc % NBUF)*STG + i*1024}')
            V.issue(f'buffer_load_dwordx4 v4, {SRD_W2}, {gT3} offen lds', ('W', cc))
    for cc in range(3): dma2(cc)
    seq = [(cc, ct, ft, tp) for cc in range(10) for ct in range(2) for ft in range(6) for tp in range(2)]
    breg = lambda n: 16 + 4 * (n % 8)
    def b2_issue(n):
        cc, ct, ft, tp = seq[n]
        buf = cc % NBUF
        base = ((2, 3), (13, 15))[buf // 2][ct]
        row = 32 * ft + 16 * tp
        for rd in range(2):
            r = breg(n) + 2 * rd
            L.issue(f'ds_read_b64_tr_b16 v[{r}:{r+1}], v{base} offset:{(buf % 2)*STG + (row + 8*rd)*128}', ('b', n, rd))
    PF = 5
    V.need(('W', 0)); a('s_barrier')
    for n in range(PF): b2_issue(n)
    pend_epi = []
    def epi_ops(cc, ct):
        ops = []
        CT = 2 * cc + ct
        for tt in range(NT):
            acc = A2 + 16 * (((CT % 2) * NT) + tt)
            so = f's{65 + tt}'
            ops.append(f's_add_u32 {so}, {sOUT}, {tt*40*32768 + 2*CT*32768}')
            for pc, regs in enumerate((VO_A, VO_B)):
                tmp = 48 + 8 * (tt % 2) + 4 * pc
                for d in range(4): ops.append(f'v_cvt_pk_bf16_f32 v{tmp+d}, v{acc+regs[2*d]}, v{acc+regs[2*d+1]}')
                ops.append(('st', f'buffer_store_dwordx4 v[{tmp}:{tmp+3}], v14, {SRD_WS}, {so} offen offset:{pc*512} sc1'))
        return ops
    for n, (cc, ct, ft, tp) in enumerate(seq):
        first = (ft == 0 and tp == 0); CT = 2*cc + ct
        nn = n + PF
        if nn < len(seq):
            c2 = seq[nn][0]
            if seq[nn][1:] == (0, 0, 0) and c2 > 0:
                V.need(('W', c2)); a('s_barrier')
                if c2 + 2 < 10: dma2(c2 + 2)
            b2_issue(nn)
        L.need(('b', n, 1))
        for tt in range(NT):
            acc = A2 + 16 * (((CT % 2) * NT) + tt)
            ar = PK + 8 * (ft * NT + tt) + 4 * tp
            c = '0' if first else f'v[{acc}:{acc+15}]'
            a(f'v_mfma_f32_32x32x16_bf16 v[{acc}:{acc+15}], v[{ar}:{ar+3}], v[{breg(n)}:{breg(n)+3}], {c}')
            if pend_epi and not (ft == 0):
                for _ in range(2):
                    if pend_epi:
                        o = pend_epi.pop(0)
                        if isinstance(o, tuple): V.issue(o[1], ('S',))
                        else: a(o)
        if ft == 5 and tp == 1:
            assert not pend_epi
            pend_epi = epi_ops(cc, ct)
    for o in pend_epi:
        if isinstance(o, tuple): V.issue(o[1], ('S',))
        else: a(o)
    a.label(f'{lab}_end')
    a('s_waitcnt vmcnt(0)')

def gen_gu(a, NT, lab):
    ACC = 64
    divmod_regs(a, 12, 3, 4, 3072, 's63', False, 16)
    tr_lane(a, 2, 192, 0, 16)
    a('v_add_u32 v13, 49152, v2')
    b_setup(a, NT, 40960)
    a(f's_mul_i32 {sBOFF}, {sM}, {4*NT*40960}'); a(f's_add_u32 {sBOFF}, {sBOFF}, {XN_BASE}')
    a(f's_mul_i32 {sWOFF}, {sH}, 192')
    a(f's_mul_i32 s62, {sW}, 3072')
    def soff(a_, st, i):
        if i == 0: a_(f's_add_u32 {gT3}, {sWOFF}, {st*64*3072}')
        return gT3
    dma = dma_generic([4, 5, 6, 4, 5, 6], lambda i: SRD_W if i < 3 else SRD_W2, soff, lambda i: (i % 3) * 1024 + (12288 if i >= 3 else 0))
    def tr(t, j, rd, buf):
        return (2, 13)[buf // 2], (buf % 2)*STG + (12288 if t >= 3 else 0) + (16*j + 4*rd) * 192 + (t % 3) * 64
    V = Vm(a)
    phase1(a, V, NT, 10, 6, dma, 6, tr, SRD_WS, ACC)
    a(f's_lshl_b32 {gT2}, {sM}, 2'); a(f's_add_u32 {gT2}, {gT2}, {sW}'); a(f's_mul_i32 {gT2}, {gT2}, {NT*96*1024}')
    a(f's_mul_i32 {gT3}, {sH}, {6*1024}'); a(f's_add_u32 {gT2}, {gT2}, {gT3}'); a(f's_add_u32 {gT2}, {gT2}, {HID_BASE}')
    a(f's_mov_b32 s65, {f32hex(-1.4426950408889634)}')
    for tt in range(NT):
        for t in range(3):
            g = ACC + 16 * (t * NT + tt); u = ACC + 16 * ((t + 3) * NT + tt)
            def rnd(r):
                for i in range(8): a(f'v_cvt_pk_bf16_f32 v{24+i}, v{r+2*i}, v{r+2*i+1}')
                for i in range(8):
                    a(f'v_lshlrev_b32 v{r+2*i}, 16, v{24+i}'); a(f'v_and_b32 v{r+2*i+1}, 0xffff0000, v{24+i}')
            rnd(g); rnd(u)
            for i in range(16): a(f'v_mul_f32 v{g+i}, s65, v{g+i}')
            for i in range(16): a(f'v_exp_f32 v{g+i}, v{g+i}')
            for i in range(16): a(f'v_add_f32 v{g+i}, 1.0, v{g+i}')
            for i in range(16): a(f'v_rcp_f32 v{g+i}, v{g+i}')
            rnd(g)
            for i in range(16): a(f'v_mul_f32 v{g+i}, v{g+i}, v{u+i}')
            for tp in range(2):
                tmp = 16 + 4 * tp
                for d in range(4): a(f'v_cvt_pk_bf16_f32 v{tmp+d}, v{g+8*tp+2*d}, v{g+8*tp+2*d+1}')
                a(f's_add_u32 {gT3}, {gT2}, {tt*96*1024 + (2*t+tp)*1024}')
                a(f'buffer_store_dwordx4 v[{tmp}:{tmp+3}], v1, {SRD_WS}, {gT3} offen sc1')
    a(f's_mul_i32 s62, {sW}, 6144')
    a('s_waitcnt vmcnt(0)')

def gen_down(a, NT, lab):
    ACC = 64
    divmod_regs(a, 20, 5, 4, 1280, 's63', False, 16)
    tr_lane(a, 2, 320, 1, 16)
    a('v_add_u32 v13, 49152, v2')
    b_setup(a, NT, 96 * 1024)
    a(f's_mul_i32 {sBOFF}, {sM}, {4*NT*96*1024}'); a(f's_add_u32 {sBOFF}, {sBOFF}, {HID_BASE}')
    a(f's_mul_i32 {sWOFF}, {sH}, 320')
    a(f's_mul_i32 s62, {sW}, 5120')
    def soff(a_, st, i):
        if i == 0: a_(f's_add_u32 {gT3}, {sWOFF}, {st*64*1280}')
        return gT3
    dma = dma_generic([4, 5, 6, 7, 8], lambda i: SRD_W, soff, lambda i: i * 1024)
    def tr(t, j, rd, buf):
        return (2, 13)[buf // 2], (buf % 2)*STG + (16*j + 8*rd) * 320 + t * 64
    V = Vm(a)
    phase1(a, V, NT, 24, 5, dma, 5, tr, SRD_WS, ACC)
    a('v_and_b32 v16, 31, v10'); a('v_mul_u32_u24 v16, 1280, v16'); a('v_lshrrev_b32 v17, 5, v10'); a('v_lshl_add_u32 v14, v17, 3, v16')
    a(f's_lshl_b32 {gT2}, {sM}, 2'); a(f's_add_u32 {gT2}, {gT2}, {sW}'); a(f's_mul_i32 {gT2}, {gT2}, {NT*32*1280}')
    a(f's_mul_i32 {gT3}, {sH}, 320'); a(f's_add_u32 {gT2}, {gT2}, {gT3}'); a(f's_add_u32 {gT2}, {gT2}, {G_BASE}')
    a(f's_mov_b32 s65, {f32hex(-1.4426950408889634)}')
    for tt in range(NT):
        for t in range(5):
            d0 = ACC + 16 * (t * NT + tt)
            for i in range(8): a(f'v_cvt_pk_bf16_f32 v{16+i}, v{d0+2*i}, v{d0+2*i+1}')
            for i in range(8):
                a(f'v_lshlrev_b32 v{d0+2*i}, 16, v{16+i}'); a(f'v_and_b32 v{d0+2*i+1}, 0xffff0000, v{16+i}')
            for i in range(16): a(f'v_mul_f32 v{24+i}, s65, v{d0+i}')
            for i in range(16): a(f'v_exp_f32 v{24+i}, v{24+i}')
            for i in range(16): a(f'v_add_f32 v{24+i}, 1.0, v{24+i}')
            for i in range(16): a(f'v_rcp_f32 v{24+i}, v{24+i}')
            for i in range(16): a(f'v_mul_f32 v{24+i}, v{24+i}, v{d0+i}')
            for q in range(4):
                tmp = 40 + 2 * q
                a(f'v_cvt_pk_bf16_f32 v{tmp}, v{24+4*q}, v{24+4*q+1}'); a(f'v_cvt_pk_bf16_f32 v{tmp+1}, v{24+4*q+2}, v{24+4*q+3}')
                a(f's_add_u32 {gT3}, {gT2}, {tt*32*1280 + t*64}')
                a(f'buffer_store_dwordx2 v[{tmp}:{tmp+1}], v14, {SRD_WS}, {gT3} offen offset:{q*16} sc1')
    a(f's_mul_i32 s62, {sW}, 6144')
    a('s_waitcnt vmcnt(0)')

def gen_init(a):
    a('s_cmp_ge_u32 s2, 128'); a('s_cbranch_scc1 init_done')
    a('s_load_dwordx2 s[84:85], s[0:1], 104'); a('s_load_dwordx2 s[88:89], s[0:1], 0'); a('s_load_dwordx2 s[90:91], s[0:1], 8')
    a('v_and_b32 v10, 63, v0'); a('v_lshrrev_b32 v1, 6, v0')
    a('s_waitcnt lgkmcnt(0)')
    mk_srd(a, 4, 84, WS_SIZE); mk_srd(a, 8, 88, S*DM*2); mk_srd(a, 12, 90, 8*DM*2)
    a('v_lshrrev_b32 v2, 4, v10'); a('v_lshl_add_u32 v2, v1, 2, v2'); a('s_lshl_b32 s3, s2, 4'); a('v_add_u32 v2, s3, v2')
    a('v_and_b32 v3, 15, v10')
    a('v_mul_u32_u24 v4, 1280, v2'); a('v_lshl_add_u32 v4, v3, 4, v4')
    for i in range(5): a(f'buffer_load_dwordx4 v[{16+4*i}:{19+4*i}], v4, s[8:11], 0 offen offset:{i*256}')
    a('v_mov_b32 v40, -1'); a('v_mov_b32 v41, -1'); a('v_mov_b32 v42, -1'); a('v_mov_b32 v43, -1')
    a('s_lshl_b32 s3, s2, 12'); a('v_lshlrev_b32 v5, 4, v0'); a('v_add_u32 v5, s3, v5')
    for ps in range(9):
        a(f's_mov_b32 s20, {ps*524288}')
        if ps == 0:
            a('v_cmp_le_u32 vcc, 32768, v5'); a('s_and_saveexec_b64 s[22:23], vcc')
        a('buffer_store_dwordx4 v[40:43], v5, s[4:7], s20 offen')
        if ps == 0: a('s_mov_b64 exec, s[22:23]')
    a('s_cmp_ge_u32 s2, 16'); a('s_cbranch_scc1 init_nofl')
    a('v_mov_b32 v44, 0'); a('v_mov_b32 v45, 0'); a('v_mov_b32 v46, 0'); a('v_mov_b32 v47, 0')
    a(f's_mov_b32 s20, {FLAG_BASE}')
    a('buffer_store_dwordx4 v[44:47], v5, s[4:7], s20 offen')
    a.label('init_nofl')
    a('s_cmp_eq_u32 s2, 127'); a('s_cbranch_scc0 init_nomem')
    for i in range(8):
        blk = i >> 1
        a(f'v_add_u32 v6, {(i & 1)*256}, v0')
        a('v_lshrrev_b32 v7, 6, v6')
        if blk >= 2: a('v_add_u32 v7, 8, v7')
        a('v_and_b32 v8, 7, v6'); a('v_mul_u32_u24 v8, 1280, v8')
        a('v_bfe_u32 v9, v6, 4, 2'); a('v_lshlrev_b32 v9, 5, v9')
        a('v_bfe_u32 v11, v6, 3, 1'); a('v_lshlrev_b32 v11, 2, v11')
        a('v_lshlrev_b32 v12, 7, v7')
        a('v_add3_u32 v8, v8, v9, v11'); a('v_add_u32 v8, v8, v12')
        for p in range(4): a(f'buffer_load_dword v{48+p}, v8, s[12:15], 0 offen offset:{p*8}')
        a('s_waitcnt vmcnt(0)')
        a('v_cmp_gt_u32 vcc, 10, v7')
        for p in range(4): a(f'v_cndmask_b32 v{48+p}, v40, v{48+p}, vcc')
        a(f'v_lshlrev_b32 v6, 4, v6'); a(f's_mov_b32 s20, {blk*8192}')
        a('buffer_store_dwordx4 v[48:51], v6, s[4:7], s20 offen')
    a.label('init_nomem')
    a('s_waitcnt vmcnt(0)')
    F = 64
    for i in range(20):
        a(f'v_lshlrev_b32 v{F+2*i}, 16, v{16+i}'); a(f'v_and_b32 v{F+2*i+1}, 0xffff0000, v{16+i}')
    def rowsum(dst):
        for sh in (8, 4, 2, 1):
            a(f'v_add_f32_dpp v{dst}, v{dst}, v{dst} row_ror:{sh} row_mask:0xf bank_mask:0xf')
    a(f'v_add_f32 v48, v{F}, v{F+1}')
    for i in range(2, 40): a(f'v_add_f32 v48, v48, v{F+i}')
    rowsum(48)
    a(f'v_mul_f32 v48, {f32hex(1/640)}, v48')
    a(f'v_sub_f32 v49, v{F}, v48'); a('v_mul_f32 v50, v49, v49')
    for i in range(1, 40):
        a(f'v_sub_f32 v49, v{F+i}, v48'); a('v_fmac_f32 v50, v49, v49')
    rowsum(50)
    a(f'v_mul_f32 v50, {f32hex(1/640)}, v50')
    rb = lambda r: (a(f'v_cvt_pk_bf16_f32 v{r}, v{r}, v{r}'), a(f'v_lshlrev_b32 v{r}, 16, v{r}'))
    rb(48); rb(50)
    a(f'v_add_f32 v50, {f32hex(1e-5)}, v50'); rb(50)
    a('v_sqrt_f32 v50, v50'); rb(50)
    a('v_rcp_f32 v51, v50')
    a('v_fma_f32 v52, -v50, v51, 2.0'); a('v_mul_f32 v51, v51, v52')
    for i in range(20):
        a(f'v_sub_f32 v{F+2*i}, v{F+2*i}, v48'); a(f'v_sub_f32 v{F+2*i+1}, v{F+2*i+1}, v48')
        a(f'v_cvt_pk_bf16_f32 v53, v{F+2*i}, v{F+2*i+1}')
        a(f'v_lshlrev_b32 v{F+2*i}, 16, v53'); a(f'v_and_b32 v{F+2*i+1}, 0xffff0000, v53')
        a(f'v_mul_f32 v{F+2*i}, v{F+2*i}, v51'); a(f'v_mul_f32 v{F+2*i+1}, v{F+2*i+1}, v51')
        a(f'v_cvt_pk_bf16_f32 v{16+i}, v{F+2*i}, v{F+2*i+1}')
    a('v_lshrrev_b32 v5, 5, v2'); a('v_mul_u32_u24 v5, 40960, v5'); a('v_and_b32 v6, 31, v2'); a('v_lshl_add_u32 v5, v6, 4, v5')
    a('v_lshrrev_b32 v6, 1, v3'); a('v_lshl_add_u32 v5, v6, 10, v5'); a('v_and_b32 v6, 1, v3'); a('v_lshl_add_u32 v5, v6, 9, v5')
    for i in range(5):
        a(f's_mov_b32 s20, {XN_BASE + i*8*1024}')
        a(f'buffer_store_dwordx4 v[{16+4*i}:{19+4*i}], v5, s[4:7], s20 offen')
    a.label('init_done')
    a('s_endpgm')

def load_ptrs(a):
    a('s_load_dwordx2 s[84:85], s[0:1], 104')
    a('s_load_dwordx4 s[68:71], s[0:1], 16')
    a('s_load_dwordx4 s[72:75], s[0:1], 32')
    a('s_load_dwordx4 s[76:79], s[0:1], 64')
    a('s_load_dwordx2 s[80:81], s[0:1], 80')
    a('v_lshrrev_b32 v1, 6, v0')
    a(f'v_readfirstlane_b32 {sW}, v1')
    a('s_waitcnt lgkmcnt(0)')
    mk_srd(a, 4, 84, WS_SIZE)

def run_task(a, NT, lab, kinds=(0,1,2,3,4)):
    WSZ = DM*H*DH*2
    if 3 in kinds: a('s_cmp_eq_u32 s64, 3'); a(f's_cbranch_scc1 {lab}_gu')
    if 4 in kinds: a('s_cmp_eq_u32 s64, 4'); a(f's_cbranch_scc1 {lab}_dn')
    if 0 in kinds:
        a('s_cmp_eq_u32 s64, 0'); a('s_cselect_b32 s8, s70, s68'); a('s_cselect_b32 s9, s71, s69')
        a('s_cmp_eq_u32 s64, 2'); a('s_cselect_b32 s8, s72, s8'); a('s_cselect_b32 s9, s73, s9')
        a('s_and_b32 s9, s9, 0xffff'); a(f's_mov_b32 s10, {WSZ}'); a('s_mov_b32 s11, 0x20000')
        mk_srd(a, 12, 74, WSZ)
        gen_proj(a, NT, lab + 'p')
        a(f's_branch {lab}_taskdone')
    if 3 in kinds:
        a.label(f'{lab}_gu')
        mk_srd(a, 8, 76, DM*FF*2); mk_srd(a, 12, 78, DM*FF*2)
        gen_gu(a, NT, lab + 'g')
        a(f's_branch {lab}_taskdone')
    if 4 in kinds:
        a.label(f'{lab}_dn')
        mk_srd(a, 8, 80, FF*DM*2)
        gen_down(a, NT, lab + 'd')
    a.label(f'{lab}_taskdone')

def gen_gemm_kernel(which, NT=2):
    a = Asm()
    nm = 16 // NT
    a(f's_cmp_ge_u32 s2, 256'); a(f's_cbranch_scc1 {which}_done')
    load_ptrs(a)
    setup_common(a, NT)
    a('s_mov_b32 s67, s2')
    a.label(f'{which}_next')
    if which == 'A':
        a(f's_cmp_ge_u32 s67, {nm*112}'); a(f's_cbranch_scc1 {which}_done')
        a(f's_mul_hi_u32 {sM}, s67, {(2**32 + 111)//112}'); a(f's_mul_i32 {gT0}, {sM}, 112'); a(f's_sub_u32 {gT0}, s67, {gT0}')
        a(f's_lshr_b32 {gT1}, {gT0}, 5'); a(f's_and_b32 {sH}, {gT0}, 31')
        a(f's_cmp_eq_u32 {gT1}, 1'); a('s_cselect_b32 s64, 2, 0')
        a(f's_cmp_eq_u32 {gT1}, 2'); a('s_cselect_b32 s64, 1, s64')
        a(f's_cmp_eq_u32 {gT1}, 3'); a('s_cselect_b32 s64, 3, s64')
    else:
        a(f's_cmp_ge_u32 s67, {nm*4}'); a(f's_cbranch_scc1 {which}_done')
        a(f's_lshr_b32 {sM}, s67, 2'); a(f's_and_b32 {sH}, s67, 3'); a('s_mov_b32 s64, 4')
    run_task(a, NT, which, (0,1,2,3) if which == 'A' else (4,))
    a('s_barrier')
    a('s_add_u32 s67, s67, 256')
    a(f's_branch {which}_next')
    a.label(f'{which}_done')
    a('s_endpgm')
    return a

if __name__ == '__main__':
    import sys
    NT = int(sys.argv[2]) if len(sys.argv) > 2 else 2
    ai = Asm(); gen_init(ai)
    A = gen_gemm_kernel('A', NT); B = gen_gemm_kernel('B', NT)
    s = '; @launch kernel=init_kernel grid=(128,1,1) block=(256,1,1) lds=0\n'
    s += '; @launch kernel=gemma_kernel grid=(256,1,1) block=(256,1,1) lds=98304\n'
    s += '; @launch kernel=gemmb_kernel grid=(256,1,1) block=(256,1,1) lds=98304\n'
    s += '.amdgcn_target "amdgcn-amd-amdhsa--gfx950"\n.text\n'
    s += head('init_kernel') + ai.text() + head('gemma_kernel') + A.text() + head('gemmb_kernel') + B.text()
    s += '.section .rodata,"a"\n' + desc('init_kernel', 128, 102, 128) + desc('gemma_kernel') + desc('gemmb_kernel')
    open(sys.argv[1], 'w').write(s)
    print('init', ai.count(), 'A', A.count(), 'B', B.count())
```

```python
KB = 1024; MB = 1024 * 1024
NSEG = 64; H = 32; DH = 192; DM = 640; S = 2048; FF = 1536
MEM_BASE = 0
MEM_SLOT = 32 * KB
P_BASE = 96 * KB
P_SLOT = 64 * KB
U_BASE = 288 * KB
U_SLOT = 640 * KB
U2_BASE = 2 * MB + 64 * KB
PT_BASE = 4 * MB
PT_SLOT = 80 * KB
XN_BASE = 8 * MB
KX_BASE = 16 * MB
QX_BASE = 48 * MB
VO_BASE = 80 * MB
G_BASE = 168 * MB
HID_BASE = 176 * MB
S_BASE = 184 * MB
FLAG_BASE = 192 * MB
FL_K, FL_Q, FL_VO, FL_H, FL_G, FL_S = 0, 8, 16, 24, 32, 48
DIRECT = 16
def flag(i): return FLAG_BASE + 128 * i
WS_SIZE = 256 * MB

def sigma(gb, j):
    return 16 * (gb >> 1) + 4 * (gb & 1) + (j & 3) + 8 * (j >> 2)
def klocal_of_token(tau):
    gb = 2 * (tau >> 4) + ((tau >> 2) & 1)
    j = (tau & 3) + 4 * ((tau >> 3) & 1)
    return 8 * gb + j
def kpos(kl):
    return kl ^ (12 if (kl & 16) else 0)
RHO = [0, 1, 4, 5, 2, 3, 6, 7]
```

```python
from asmlib import *
from layout import *
import gen_chain as g1, gen_chain2 as g2, gen_gemm as gg
from gen_chain import wait_flag, mk_srd, sW, sIDX, sSTEP, SRD_WS, calibrate, common_prologue
from gen_gemm import sH, sM, gT0, gT1, gT2, gT3

def task_blocks():
    B = []
    kvq = lambda m: [(0, m, 32), (2, m, 32), (1, m, 32)]
    gu = lambda m: [(3, m, 16)]
    dn = lambda m: [(4, 2*m, 4), (4, 2*m+1, 4)]
    B += kvq(0) + kvq(1) + gu(0) + gu(1) + kvq(2) + dn(0) + dn(1) + gu(2)
    for m in range(3, 8):
        B += kvq(m) + dn(m - 1) + gu(m)
    B += dn(7)
    B += [(5, 0, DIRECT)]
    return B

def gen_f(a):
    a('v_lshlrev_b32 v2, 4, v0')
    a(f's_mul_i32 s65, {sH}, 40960')
    a(f's_add_u32 s66, s65, {S_BASE}'); a(f's_add_u32 s67, s65, {G_BASE}')
    for i in range(10):
        st = i * 4096
        a(f's_add_u32 {gT0}, s65, {st}'); a(f's_add_u32 {gT1}, s66, {st}'); a(f's_add_u32 {gT2}, s67, {st}')
        b = 16 + 12 * (i % 5)
        a(f'buffer_load_dwordx4 v[{b}:{b+3}], v2, s[16:19], {gT0} offen')
        a(f'buffer_load_dwordx4 v[{b+4}:{b+7}], v2, {SRD_WS}, {gT1} offen sc1')
        a(f'buffer_load_dwordx4 v[{b+8}:{b+11}], v2, {SRD_WS}, {gT2} offen sc1')
        if i % 5 == 4:
            a('s_waitcnt vmcnt(0)')
            for k in range(5):
                bb = 16 + 12 * k
                for d in range(4):
                    x, s_, g = bb + d, bb + 4 + d, bb + 8 + d
                    a(f'v_lshlrev_b32 v80, 16, v{s_}'); a(f'v_and_b32 v81, 0xffff0000, v{s_}')
                    a(f'v_lshlrev_b32 v82, 16, v{g}'); a(f'v_and_b32 v83, 0xffff0000, v{g}')
                    a('v_mul_f32 v80, v80, v82'); a('v_mul_f32 v81, v81, v83')
                    a('v_cvt_pk_bf16_f32 v80, v80, v81')
                    a('v_lshlrev_b32 v82, 16, v80'); a('v_and_b32 v83, 0xffff0000, v80')
                    a(f'v_lshlrev_b32 v80, 16, v{x}'); a(f'v_and_b32 v81, 0xffff0000, v{x}')
                    a('v_add_f32 v80, v80, v82'); a('v_add_f32 v81, v81, v83')
                    a(f'v_cvt_pk_bf16_f32 v{x}, v80, v81')
                a(f's_add_u32 {gT0}, s65, {(i - 4 + k) * 4096}')
                a(f'buffer_store_dwordx4 v[{bb}:{bb+3}], v2, s[20:23], {gT0} offen')
    a('s_waitcnt vmcnt(0)')

def gen_worker(a, P):
    gg.load_ptrs(a)
    gg.setup_common(a, 2)
    B = task_blocks()
    total = sum(b[2] for b in B)
    a.label('wk_next')
    a(f's_cmp_eq_u32 {sW}, 0'); a('s_cbranch_scc0 wk_tw')
    a('v_mov_b32 v2, 44'); a('v_mov_b32 v3, 1'); a('s_mov_b64 exec, 1')
    a('global_atomic_add v4, v2, v3, s[86:87] sc0'); a('s_waitcnt vmcnt(0)')
    a('v_mov_b32 v2, 98304'); a('ds_write_b32 v2, v4'); a('s_waitcnt lgkmcnt(0)')
    a('s_mov_b64 exec, -1')
    a.label('wk_tw')
    a('s_barrier')
    a('v_mov_b32 v2, 98304'); a('ds_read_b32 v4, v2'); a('s_waitcnt lgkmcnt(0)')
    a('v_readfirstlane_b32 s67, v4')
    a('s_barrier')
    a(f's_cmp_ge_u32 s67, {total}'); a('s_cbranch_scc1 done')
    cum = []; t = 0
    for b in B: cum.append((t, t + b[2], b)); t += b[2]
    st, en, b = cum[-1]
    a(f's_mov_b32 s66, {(b[0] << 8) | b[1]}'); a(f's_mov_b32 s65, {st}')
    for st, en, b in reversed(cum[:-1]):
        a(f's_cmp_lt_u32 s67, {en}'); a(f's_cselect_b32 s66, {(b[0] << 8) | b[1]}, s66'); a(f's_cselect_b32 s65, {st}, s65')
    a('s_lshr_b32 s64, s66, 8'); a(f's_and_b32 {sM}, s66, 0xff'); a(f's_sub_u32 {sH}, s67, s65')
    a('s_cmp_eq_u32 s64, 5'); a('s_cbranch_scc1 wk_f')
    a('s_cmp_eq_u32 s64, 4'); a('s_cbranch_scc1 wk_dn')
    gg.run_task(a, 2, 'w', (0, 1, 2, 3))
    a('s_lshl_b32 s65, s64, 3'); a(f's_add_u32 s65, s65, {sM}')
    a('s_branch wk_sig')
    a.label('wk_dn')
    a(f's_lshr_b32 s84, {sM}, 1'); wait_flag(a, 'wdn', 's84', FL_H, 16, 16, sleep=4)
    gg.run_task(a, 1, 'x', (4,))
    a(f's_add_u32 s65, {sM}, {FL_G}')
    a.label('wk_sig')
    a('s_barrier')
    a(f's_cmp_eq_u32 {sW}, 0'); a('s_cbranch_scc0 wk_next')
    a('s_lshl_b32 s65, s65, 7'); a(f's_add_u32 s65, s65, {FLAG_BASE}')
    a('v_mov_b32 v3, 1'); a('s_mov_b64 exec, 1')
    a(f'buffer_atomic_add v3, off, {SRD_WS}, s65 sc1')
    a('s_mov_b64 exec, -1')
    a('s_branch wk_next')
    a.label('wk_f')
    wait_flag(a, 'wf1', sH, FL_S, 40, 16, sleep=8)
    a(f's_lshr_b32 s84, {sH}, 2'); wait_flag(a, 'wf2', 's84', FL_G, 4, 16, sleep=8)
    gen_f(a)
    a('s_branch wk_next')

def gen_mega(P):
    a = Asm()
    common_prologue(a, P)
    a('s_cmp_eq_u32 s42, 84'); a('s_cbranch_scc0 nocal')
    calibrate(a)
    a('s_branch role_w')
    a.label('nocal')
    a('s_cmp_ge_u32 s42, 128'); a('s_cbranch_scc1 role_w')
    a('s_cmp_lt_u32 s42, 64'); a('s_cbranch_scc1 placed')
    a('s_and_b32 s41, s42, 31'); a('s_cmp_ge_u32 s41, 20'); a('s_cbranch_scc1 role_w')
    a('s_lshr_b32 s43, s42, 5'); a('s_lshl_b32 s42, s41, 1'); a('s_add_u32 s42, s42, s43'); a('s_add_u32 s42, s42, 62')
    a.label('placed')
    a('s_lshl_b32 s48, s42, 11'); a(f's_add_u32 s48, s48, {FLAG_BASE + 65536}')
    a('s_cmp_lt_u32 s42, 32'); a('s_cbranch_scc1 role_qk')
    a('s_cmp_lt_u32 s42, 64'); a('s_cbranch_scc1 role_vo')
    a('s_branch role_r')
    a.label('role_qk')
    a(f's_mov_b32 {sIDX}, s42'); mk_srd(a, 8, 92, DM*H*DH*2); mk_srd(a, 12, 94, DM*H*DH*2)
    def wait_kq(a_, tag):
        if tag == 'qk0': a_('s_mov_b32 s84, 0')
        else:
            a_(f's_add_u32 s84, {sSTEP}, 1'); a_('s_and_b32 s83, s84, 7'); a_('s_cmp_eq_u32 s83, 0'); a_(f's_cbranch_scc0 {tag}_nw')
            a_('s_lshr_b32 s84, s84, 3')
        wait_flag(a_, tag + 'k', 's84', FL_K, 32, 16); wait_flag(a_, tag + 'q', 's84', FL_Q, 32, 16)
        if tag != 'qk0': a_.label(f'{tag}_nw')
    P['wait_kq'] = wait_kq
    g2.gen_qk(a, P)
    a.label('role_vo')
    a(f's_sub_u32 {sIDX}, s42, 32'); mk_srd(a, 8, 96, DM*H*DH*2); mk_srd(a, 12, 98, DM*H*DH*2)
    g2.gen_vo(a, P)
    a.label('role_r')
    a(f's_sub_u32 {sIDX}, s42, 64')
    g1.gen_r(a, P)
    a.label('role_w')
    gen_worker(a, P)
    a.label('timeout')
    a('v_mov_b32 v2, 252'); a('v_mov_b32 v3, 0xdead'); a('s_mov_b64 exec, 1')
    a('global_store_dword v2, v3, s[86:87]')
    a.label('done')
    a('s_endpgm')
    return a

NAME = 'recurrent_scan__memory_aug_recurrent_mem_tr__glu_gated_glu__prompt'
def build(out, P):
    ai = Asm(); gg.gen_init(ai)
    M = gen_mega(P)
    hdr = open('cdna_kernels/' + NAME + '.s.ref').read().split('; Override launch')[0]
    s = hdr + '; @launch kernel=init_kernel grid=(128,1,1) block=(256,1,1) lds=0\n'
    s += '; @launch kernel=mega_kernel grid=(256,1,1) block=(256,1,1) lds=163840\n'
    s += '.amdgcn_target "amdgcn-amd-amdhsa--gfx950"\n.text\n'
    s += head('init_kernel') + ai.text() + head('mega_kernel') + M.text()
    s += '.section .rodata,"a"\n' + desc('init_kernel', 128, 102, 128) + desc('mega_kernel')
    open(out, 'w').write(s)
    print(out, len(s), 'bytes', M.count(), 'instr')

if __name__ == '__main__':
    import sys
    P = dict(prof=0, plainP=0, plainM=0, steps=64, mega=1)
    for kv in sys.argv[2:]:
        k, v = kv.split('='); P[k] = int(v)
    build(sys.argv[1], P)
```
